```python
import torch

def _softmax(x, axis=-1):
    return torch.softmax(x, dim=axis)

def _gelu(x):
    return torch.nn.functional.gelu(x, approximate='tanh')

def _silu(x):
    return torch.nn.functional.silu(x)

def _sigmoid(x):
    return torch.sigmoid(x)

def _layernorm(x, axis=-1, eps=1e-05):
    m = x.mean(dim=axis, keepdim=True)
    v = x.var(dim=axis, keepdim=True, unbiased=False)
    return (x - m) / torch.sqrt(v + eps)

def _scatter_add(tgt, idx, src, axis=0):
    return tgt.clone().index_add_(axis, idx, src)

def _segment_sum(src, seg, n):
    out = torch.zeros((n,) + src.shape[1:], dtype=src.dtype)
    return out.index_add_(0, seg, src)

def _pad(x, pw):
    flat = tuple((v for pair in reversed(pw) for v in pair))
    return torch.nn.functional.pad(x, flat)
kernel_name = 'adaLN_cond__ssm_conv_s4__glu_gated_bilinear__prompt'

def setup_inputs():

    _w = lambda a: (lambda t: t.to(torch.bfloat16) if t.is_floating_point() else t)(torch.as_tensor(a))

    def _A_setup():
        B, L, D, N = (1, 2048, 448, 256)
        A_re = -(lambda _x: torch.exp(torch.as_tensor(_x)))((lambda *s: torch.randn(*s, dtype=torch.bfloat16) * 3.2)(D, N))
        A_im = torch.pi * (lambda *s: torch.randn(*s, dtype=torch.bfloat16) * 0.1)(D, N)
        B_re = (lambda *s: torch.randn(*s, dtype=torch.bfloat16) * 0.1)(D, N)
        B_im = (lambda *s: torch.randn(*s, dtype=torch.bfloat16) * 0.1)(D, N)
        C_re = (lambda *s: torch.randn(*s, dtype=torch.bfloat16) * 0.1)(D, N)
        C_im = (lambda *s: torch.randn(*s, dtype=torch.bfloat16) * 0.1)(D, N)
        log_dt = (lambda *s: torch.randn(*s, dtype=torch.bfloat16) * 0.1)(D) * 0.5 - 4.0
        Dskip = (lambda *s: torch.randn(*s, dtype=torch.bfloat16) * 0.1)(D)
        return {'u': _w((lambda *s: torch.randn(*s, dtype=torch.bfloat16) * 0.05)(B, L, D)), 'A_re': _w(A_re), 'A_im': _w(A_im), 'B_re': _w(B_re), 'B_im': _w(B_im), 'C_re': _w(C_re), 'C_im': _w(C_im), 'log_dt': _w(log_dt), 'Dskip': _w(Dskip)}
    _A_in = _A_setup()

    def _B_setup():
        B, S, D, F = (1, 2048, 448, 1792)
        return {'x': _w((lambda *s: torch.randn(*s, dtype=torch.bfloat16) * 0.05)(B, S, D)), 'w_gate': _w((lambda *s: torch.randn(*s, dtype=torch.bfloat16) * 1.6)(D, F) * D ** (-0.5)), 'w_up': _w((lambda *s: torch.randn(*s, dtype=torch.bfloat16) * 1.6)(D, F) * D ** (-0.5)), 'w_down': _w((lambda *s: torch.randn(*s, dtype=torch.bfloat16) * 1.6)(F, D) * F ** (-0.5))}
    _B_in = _B_setup()
    return {'A_u': _A_in['u'], 'A_A_re': _A_in['A_re'], 'A_A_im': _A_in['A_im'], 'A_B_re': _A_in['B_re'], 'A_B_im': _A_in['B_im'], 'A_C_re': _A_in['C_re'], 'A_C_im': _A_in['C_im'], 'A_log_dt': _A_in['log_dt'], 'A_Dskip': _A_in['Dskip'], 'B_x': _B_in['x'], 'B_w_gate': _B_in['w_gate'], 'B_w_up': _B_in['w_up'], 'B_w_down': _B_in['w_down'], 'c': _w((lambda *s: torch.randn(*s, dtype=torch.bfloat16) * 0.2)(1, 448) * 8.0), 'w_mod': _w((lambda *s: torch.randn(*s, dtype=torch.bfloat16) * 0.2)(448, 6 * 448) * 448 ** (-0.5) * 8.0)}

def reference(A_u, A_A_re, A_A_im, A_B_re, A_B_im, A_C_re, A_C_im, A_log_dt, A_Dskip, B_x, B_w_gate, B_w_up, B_w_down, c, w_mod):

    def _A_ref(u, A_re, A_im, B_re, B_im, C_re, C_im, log_dt, Dskip):
        Bsz, L, D = u.shape
        dt = torch.exp(log_dt)[:, None]
        A = A_re + 1j * A_im
        Bc = B_re + 1j * B_im
        Cc = C_re + 1j * C_im
        logdA = dt * A
        dB = dt * Bc
        l = (lambda x, dt: x.to(dt))(torch.arange(L), A_re.dtype)
        P = torch.exp(logdA[:, :, None] * l[None, None, :])
        K = torch.einsum('dn,dnl,dn->dl', Cc, P, dB).real
        L2 = 2 * L
        Kp = _pad(K, ((0, 0), (0, L)))
        up = (lambda x, *d: x.permute(*d))(u, 0, 2, 1)
        up = _pad(up, ((0, 0), (0, 0), (0, L)))
        Kf = (lambda x, axes=(-2, -1): torch.fft.rfft2(x.float(), dim=axes))(Kp[:, None, :], axes=(-2, -1))
        Uf = (lambda x, axes=(-2, -1): torch.fft.rfft2(x.float(), dim=axes))(up[:, :, None, :], axes=(-2, -1))
        Yf = Uf * Kf[None, :, :, :]
        y = (lambda x, s, axes=(-2, -1): torch.fft.irfft2(x, s=s, dim=axes).to(torch.bfloat16))(Yf, (1, L2), axes=(-2, -1))[:, :, 0, :L]
        y = (lambda x, *d: x.permute(*d))(y, 0, 2, 1) + u * Dskip[None, None, :]
        return y

    def _B_ref(x, w_gate, w_up, w_down):
        g = torch.einsum('bsd,df->bsf', x, w_gate)
        u = torch.einsum('bsd,df->bsf', x, w_up)
        h = g * u
        return torch.einsum('bsf,fd->bsd', h, w_down)
    x = A_u
    mod = (_silu(c) @ w_mod).reshape(c.shape[0], 6, 1, -1)
    sa, ca, ga, sb, cb, gb = (mod[:, 0].clone(), mod[:, 1].clone(), mod[:, 2].clone(), mod[:, 3].clone(), mod[:, 4].clone(), mod[:, 5].clone())
    h = _layernorm(x, axis=-1) * (1 + ca) + sa
    x = x + ga * _A_ref(h, A_A_re, A_A_im, A_B_re, A_B_im, A_C_re, A_C_im, A_log_dt, A_Dskip)
    h = _layernorm(x, axis=-1) * (1 + cb) + sb
    x = x + gb * _B_ref(h, B_w_gate, B_w_up, B_w_down)
    return x
```

```python
import re

class RegAlloc:
    def __init__(self, prefix, lo, hi):
        self.prefix = prefix; self.lo = lo; self.hi = hi
        self.used = [False] * (hi + 1); self.names = {}; self.max = lo - 1
    def alloc(self, name, n=1, align=None):
        if align is None: align = 1 if n == 1 else 2
        if name in self.names: raise Exception('dup reg ' + name)
        i = self.lo
        while True:
            i = (i + align - 1) // align * align
            if i + n - 1 > self.hi: raise Exception(f'out of {self.prefix} regs for {name} n={n}')
            if not any(self.used[i:i+n]): break
            i += 1
        for k in range(i, i + n): self.used[k] = True
        self.names[name] = (i, n); self.max = max(self.max, i + n - 1)
        return R(self.prefix, i, n)
    def at(self, name, i, n=1):
        if any(self.used[i:i+n]): raise Exception(f'reg clash {name} at {i}')
        for k in range(i, i + n): self.used[k] = True
        self.names[name] = (i, n); self.max = max(self.max, i + n - 1)
        return R(self.prefix, i, n)
    def free(self, *names):
        for name in names:
            i, n = self.names.pop(name)
            for k in range(i, i + n): self.used[k] = False
    def snapshot(self): return (list(self.used), dict(self.names))
    def restore(self, s): self.used = list(s[0]); self.names = dict(s[1])
    def nfree(self): return sum(1 for k in range(self.lo, self.hi + 1) if not self.used[k])

class R:
    def __init__(self, p, i, n): self.p = p; self.i = i; self.n = n
    def __str__(self): return f'{self.p}{self.i}' if self.n == 1 else f'{self.p}[{self.i}:{self.i+self.n-1}]'
    __repr__ = __str__
    def __format__(self, spec): return str(self)
    def __getitem__(self, k):
        if isinstance(k, slice):
            a = k.start or 0; b = self.n if k.stop is None else k.stop
            assert 0 <= a < b <= self.n, (a, b, self.n)
            return R(self.p, self.i + a, b - a)
        assert 0 <= k < self.n, (k, self.n)
        return R(self.p, self.i + k, 1)

TRANS = ('v_exp_f32', 'v_log_f32', 'v_rcp_f32', 'v_rsq_f32', 'v_sqrt_f32', 'v_sin_f32', 'v_cos_f32', 'v_rcp_iflag_f32')
reg_re = re.compile(r'\b([vsa])(\d+)\b|\b([vsa])\[(\d+):(\d+)\]|\b(vcc|exec|m0|scc)(_lo|_hi)?\b')

def regs_of(txt):
    out = set()
    for m in reg_re.finditer(txt):
        if m.group(1): out.add((m.group(1), int(m.group(2))))
        elif m.group(3):
            for k in range(int(m.group(4)), int(m.group(5)) + 1): out.add((m.group(3), k))
        else: out.add((m.group(6), 0))
    return out

class Ins:
    def __init__(self, text):
        self.text = text
        t = text.split(';')[0].strip()
        self.label = t.endswith(':')
        self.op = t.split()[0] if t and not self.label else ''
        rest = t[len(self.op):].strip() if not self.label else ''
        ops = []; depth = 0; cur = ''
        for ch in rest:
            if ch == '[': depth += 1
            if ch == ']': depth -= 1
            if ch == ',' and depth == 0: ops.append(cur.strip()); cur = ''
            else: cur += ch
        if cur.strip(): ops.append(cur.strip())
        self.ops = ops
        op = self.op
        self.valu = op.startswith('v_') and not op.startswith('v_mfma')
        self.mfma = op.startswith('v_mfma')
        self.trans = any(op.startswith(x) for x in TRANS)
        self.dpp = '_dpp' in op or 'row_' in t or 'quad_perm' in t
        self.dot = op.startswith('v_dot')
        self.vmem = op.startswith(('global_', 'buffer_', 'flat_'))
        self.ds = op.startswith('ds_')
        self.salu = op.startswith('s_')
        self.lds_dma = self.vmem and (' lds' in t or 'load_lds' in op)
        self.w = set(); self.r = set()
        first = lambda s: regs_of(s.split()[0]) if s else set()
        if self.valu or self.mfma:
            if op.startswith('v_cmp'):
                self.w = first(ops[0]); rd = ops[1:]
            elif op.startswith(('v_permlane32_swap', 'v_permlane16_swap', 'v_swap')):
                self.w = first(ops[0]) | first(ops[1]); rd = ops
            elif op.startswith(('v_add_co', 'v_sub_co', 'v_addc_co', 'v_subb_co')):
                self.w = first(ops[0]) | first(ops[1]); rd = ops[2:]
            elif op == 'v_nop': rd = []
            else:
                self.w = first(ops[0]); rd = ops[1:]
                if op.startswith(('v_fmac', 'v_dot2c', 'v_pk_fmac')) or self.dpp: rd = ops
            for o in rd: self.r |= first(o.lstrip('-').replace('abs(', '').replace('|', ''))
            if op.startswith('v_cndmask') and len(ops) == 3: self.r.add(('vcc', 0))
        elif self.vmem:
            if 'store' in op or ('atomic' in op and 'sc0' not in t):
                for o in ops: self.r |= first(o)
            elif self.lds_dma:
                for o in ops: self.r |= first(o)
                self.r.add(('m0', 0))
            else:
                self.w = first(ops[0])
                for o in ops[1:]: self.r |= first(o)
                if 'd16' in op: self.r |= self.w
        elif self.ds:
            if op.startswith(('ds_read', 'ds_bpermute', 'ds_permute', 'ds_swizzle')) or '_rtn' in op:
                self.w = first(ops[0])
                for o in ops[1:]: self.r |= first(o)
            else:
                for o in ops: self.r |= first(o)
            if 'addtid' in op: self.r.add(('m0', 0))
        elif self.salu:
            if op.startswith(('s_cmp', 's_cbranch', 's_branch', 's_waitcnt', 's_nop', 's_barrier', 's_endpgm', 's_sleep', 's_setprio', 's_bitcmp')):
                for o in ops: self.r |= first(o)
            elif ops:
                self.w = first(ops[0])
                for o in ops[1:]: self.r |= first(o)
                if 'saveexec' in op: self.w.add(('exec', 0))
        if self.mfma:
            self.passes = 8 if '32x32x16' in op else 4
            self.A = first(ops[1]); self.B = first(ops[2]); self.C = first(ops[3]); self.D = first(ops[0])
        self.widestore = self.vmem and 'store' in op and ('x4' in op or 'x3' in op)
        if self.widestore:
            self.sdata = first(ops[1]) if op.startswith('global_') else first(ops[0])
    def slots(self):
        if self.label or not self.op or self.op.startswith('.'): return 0
        if self.op == 's_nop': return int(self.ops[0], 0) + 1
        return 1

def need(p, c):
    n = 0
    vw = {x for x in p.w if x[0] in 'va'}; sw = {x for x in p.w if x[0] in ('s', 'vcc')}
    if p.valu:
        if c.dpp and c.valu and (vw & c.r): n = max(n, 2)
        if p.trans and c.valu and not c.trans and (vw & c.r): n = max(n, 1)
        if c.valu and (sw & c.r): n = max(n, 4 if c.op.startswith(('v_readlane', 'v_writelane')) else 2)
        if c.vmem and (sw & c.r): n = max(n, 5)
        if c.mfma and (vw & c.r): n = max(n, 2)
        if c.op.startswith(('v_readlane', 'v_readfirstlane')) and (vw & c.r): n = max(n, 1)
        if c.op.startswith('v_permlane') and (vw & c.r): n = max(n, 2)
        if p.dot:
            if c.dot and c.op == p.op:
                srcab = set()
                for o in c.ops[1:3]: srcab |= regs_of(o.split()[0])
                if vw & srcab: n = max(n, 3)
            elif (vw & (c.r | c.w)) and (c.valu or c.mfma or c.vmem or c.ds): n = max(n, 3)
    if p.mfma:
        big = 12 if p.passes == 8 else 8
        if c.mfma:
            if p.D & (c.A | c.B): n = max(n, big)
            if p.D & c.C and not (p.D == c.C and p.passes == c.passes): n = max(n, big - 2)
            if (p.D & c.D) and not (p.D & c.C): n = max(n, big - 2)
        elif (c.valu and (p.D & (c.r | c.w))) or ((c.vmem or c.ds) and (p.D & (c.r | c.w))): n = max(n, big)
        if c.valu and (p.C & c.w): n = max(n, 7 if p.passes == 8 else 3)
    if p.salu and ('m0', 0) in p.w and ('m0', 0) in c.r and (c.ds or c.vmem): n = max(n, 1)
    if p.widestore and (c.valu or c.mfma) and (p.sdata & c.w): n = max(n, 2)
    if p.widestore and (c.vmem or c.ds) and (p.sdata & c.w): n = max(n, 1)
    return n

class Asm:
    def __init__(self):
        self.ins = []; self.nlabel = 0; self.nnops = 0
    def __call__(self, text):
        for line in text.split('\n'):
            line = line.strip()
            if not line or line.startswith(';'): continue
            self._emit(Ins(line))
    def _emit(self, c):
        if c.op and not c.op.startswith('.'):
            d = 0; req = 0
            for p in reversed(self.ins):
                if d >= 20: break
                if p.op and not p.label:
                    n = need(p, c)
                    if n - d > req: req = n - d
                d += p.slots()
            if req > 0:
                self.nnops += 1
                self.ins.append(Ins(f's_nop {req-1}'))
        self.ins.append(c)
    def label(self, base='L'):
        self.nlabel += 1; return f'{base}_{self.nlabel}'
    def check_branches(self):
        pos = {i.text.split(';')[0].strip()[:-1]: k for k, i in enumerate(self.ins) if i.label}
        bad = []
        for k, i in enumerate(self.ins):
            if i.op.startswith(('s_cbranch', 's_branch')) and i.ops[0] in pos:
                tgt = pos[i.ops[0]]
                head = []; d = 0
                for c in self.ins[tgt:]:
                    if d >= 20: break
                    head.append((c, d)); d += c.slots()
                    if c.op in ('s_branch', 's_endpgm'): break
                d0 = 0
                for p in reversed(self.ins[:k+1]):
                    if d0 >= 20: break
                    if p.op and not p.label:
                        for c, dc in head:
                            if c.op and not c.label and need(p, c) > d0 + dc: bad.append((p.text, c.text, need(p, c), d0 + dc))
                    d0 += p.slots()
        return bad
    def text(self):
        return '\n'.join((i.text if i.label else '    ' + i.text) for i in self.ins)
```

```python
import sys, math
from asmlib import Asm, RegAlloc, R

NAME = 'adaLN_cond__ssm_conv_s4__glu_gated_bilinear__prompt'
WS_EPOCH = 0
WS_STATS = 0x1000
WS_MOD   = 0x10000
WS_FLAGW = 0x20000
WS_C12   = 0x30000
WS_FLAGH = 0x40000
WS_TIME  = 0x80000
WS_X1    = 0x100000
WS_WP    = 0x300000
WS_WD    = 0x700000
WS_HH    = 0x900000
WS_XT    = 0x1100000
WS_END   = 0x1500000
KROW = 2064
L_KOP = 0
L_KP  = 0
L_H   = 16640
L_XR  = 25792
L_EX  = 34048
L_KV  = 110080
KVS   = 3088
L_MODV = 146432
L_C12 = 150016
L_GB  = 152064
L_GS  = 155904
L_FL  = 156416
L_CS  = 156672
LDS_TOTAL = 163840
SLOT = 29184
SPIN = 20000

LOG2E = 0x3fb8aa3b
INV2PI = 0x3e22f983

class Gen:
    def __init__(self, stop=None, diag=False):
        self.a = Asm(); self.stop = stop; self.diag = diag
        self.v = RegAlloc('v', 1, 255); self.s = RegAlloc('s', 64, 75 if diag else 101)
        self.nstamp = 0
    def stamp(self, k):
        if self.diag: self.a(f's_memrealtime s[{76+2*k}:{77+2*k}]')
    def poll(self, load, check):
        a = self.a; L = a.label('poll'); D = a.label('pdone')
        cnt = self.s.alloc('spin')
        a(f's_mov_b32 {cnt}, 0')
        a(f'{L}:')
        load()
        a('s_waitcnt vmcnt(0)')
        check()
        a(f's_cbranch_vccz {D}')
        a(f's_add_u32 {cnt}, {cnt}, 1')
        a(f's_cmp_lt_u32 {cnt}, {SPIN}')
        a('s_sleep 2')
        a(f's_cbranch_scc1 {L}')
        a(f'{D}:')
        self.s.free('spin')
    def ldsflag_wait(self, addr, tmp4, vaddr):
        a = self.a; L = a.label('lf'); D = a.label('lfd')
        cnt = self.s.alloc('spin')
        a(f's_mov_b32 {cnt}, 0')
        a(f'v_mov_b32 {vaddr}, {addr}')
        a(f'{L}:')
        a(f'ds_read_b128 {tmp4}, {vaddr}')
        a('s_waitcnt lgkmcnt(0)')
        a(f'v_and_b32 {tmp4[0]}, {tmp4[0]}, {tmp4[1]}')
        a(f'v_and_b32 {tmp4[2]}, {tmp4[2]}, {tmp4[3]}')
        a(f'v_and_b32 {tmp4[0]}, {tmp4[0]}, {tmp4[2]}')
        a(f'v_cmp_eq_u32 vcc, 0, {tmp4[0]}')
        a(f's_cbranch_vccz {D}')
        a(f's_add_u32 {cnt}, {cnt}, 1')
        a(f's_cmp_lt_u32 {cnt}, {SPIN*20}')
        a(f's_cbranch_scc1 {L}')
        a(f'{D}:')
        self.s.free('spin')
    def cmul(self, O, X, Z, T):
        a = self.a
        a(f'v_pk_mul_f32 {T}, {X}, {Z} op_sel:[0,0] op_sel_hi:[1,0]')
        a(f'v_pk_fma_f32 {O}, {X}, {Z}, {T} op_sel:[1,1,0] op_sel_hi:[0,1,1] neg_lo:[1,0,0]')
    def srd(self, base, ptr, size):
        a = self.a
        a(f's_mov_b32 s{base}, s{ptr}'); a(f's_mov_b32 s{base+1}, s{ptr+1}')
        a(f's_mov_b32 s{base+2}, {size}'); a(f's_mov_b32 s{base+3}, 0x20000')

    def phaseA(self):
        a = self.a; v = self.v; s = self.s
        a('s_load_dwordx16 s[16:31], s[0:1], 0')
        a('s_load_dwordx16 s[32:47], s[0:1], 64')
        a('s_load_dwordx4 s[48:51], s[0:1], 128')
        self.stamp(0)
        a('s_cmp_ge_u32 s2, 256'); a('s_cbranch_scc1 L_end')
        a('s_and_b32 s4, s2, 7'); a('s_lshr_b32 s5, s2, 3')
        lane = self.lane = v.alloc('lane'); t0 = v.alloc('t0'); t1 = v.alloc('t1'); t2 = v.alloc('t2'); t3 = v.alloc('t3')
        a(f'v_lshrrev_b32 {t0}, 6, v0'); a(f'v_and_b32 {lane}, 63, v0'); a(f'v_readfirstlane_b32 s6, {t0}')
        a('s_lshl_b32 s10, s4, 5'); a('s_add_u32 s10, s10, s5'); a('s_min_u32 s10, s10, 223')
        a('s_mul_i32 s11, s4, 21'); a('s_add_u32 s11, s11, s5')
        dummy = v.alloc('dummy', 4)
        a('s_cmp_eq_u32 s6, 7'); a('s_cbranch_scc0 L_nopf')
        a('s_getpc_b64 s[8:9]'); a('L_pc:')
        a(f's_sub_u32 s8, s8, L_pc-{NAME}_kernel'); a('s_subb_u32 s9, s9, 0')
        a('s_lshl_b32 s15, s5, 10'); a(f'v_lshl_add_u32 {t0}, {lane}, 4, s15')
        a(f'v_min_u32 {t0}, L_code_end-{NAME}_kernel-16, {t0}')
        a(f'global_load_dwordx4 {dummy}, {t0}, s[8:9]')
        a('L_nopf:')
        clr = v.alloc('clr', 4)
        for k in range(4): a(f'v_mov_b32 {clr[k]}, -1')
        cs = v.alloc('cs', 4); wm = v.alloc('wm', 8); row = v.alloc('row', 4); par = v.alloc('par', 6); wd = v.alloc('wd', 16)
        xp = v.alloc('xp', 8, 4); ga0 = v.alloc('ga0'); ga1 = v.alloc('ga1'); xa0 = v.alloc('xa0'); xa1 = v.alloc('xa1')
        self.wrow = wd
        for k in range(4): a(f'v_mov_b32 {cs[k]}, 0'); a(f'v_mov_b32 {row[k]}, 0')
        for k in range(6): a(f'v_mov_b32 {par[k]}, 0')
        a(f'v_lshrrev_b32 {ga0}, 2, v0'); a(f'v_lshlrev_b32 {ga1}, 1, {ga0}')
        a(f'v_and_b32 {t2}, 3, v0'); a(f'v_mul_u32_u24 {xa0}, 1792, {t2}'); a(f'v_lshl_add_u32 {xa0}, {ga0}, 2, {xa0}')
        a('s_mul_i32 s3, s2, 7168'); a(f'v_add_u32 {xa0}, s3, {xa0}')
        a(f'v_mul_u32_u24 {ga0}, 5376, {ga0}'); a(f'v_lshlrev_b32 {t2}, 3, {t2}')
        a('s_lshl_b32 s15, s11, 5'); a(f'v_add3_u32 {ga0}, {ga0}, {t2}, s15')
        a('s_lshl_b32 s15, s2, 3'); a('s_add_u32 s15, s15, s6'); a('s_mul_i32 s3, s15, 896')
        a(f'v_lshl_add_u32 {t3}, {lane}, 4, s3')
        strow = s.alloc('strow'); a(f's_lshl_b32 {strow}, s15, 3')
        a('s_waitcnt lgkmcnt(0)')
        a('s_load_dword s7, s[50:51], 0')
        a('s_lshl_b32 s12, s10, 2')
        a('s_load_dword s13, s[30:31], s12'); a('s_load_dword s14, s[32:33], s12')
        self.srd(52, 44, 448*5376); self.srd(56, 42, 896)
        a('s_cmp_lt_u32 s4, 7'); a('s_cbranch_scc0 L_noclr')
        a(f's_lshl_b32 s15, s10, 13'); a(f's_add_u32 s15, s15, {WS_X1}')
        a(f'v_lshl_add_u32 {t0}, v0, 4, s15')
        a(f'global_store_dwordx4 {t0}, {clr}, s[50:51] sc1')
        a('L_noclr:')
        a('s_cmp_lt_u32 s5, 21'); a('s_cbranch_scc0 L_nogl')
        for i in range(4):
            a(f's_mov_b32 s15, {i*128*5376}')
            a(f'buffer_load_dwordx2 {wm[2*i:2*i+2]}, {ga0}, s[52:55], s15 offen')
        for i in range(4): a(f'buffer_load_short_d16_hi {cs[i]}, {ga1}, s[56:59], 0 offen offset:{256*i}')
        a('L_nogl:')
        a(f'global_load_dword {xp[0]}, {xa0}, s[16:17]'); a(f'global_load_dword {xp[2]}, {xa0}, s[16:17] offset:896')
        a('s_cmp_lt_u32 s6, 6'); a('s_cselect_b32 s15, 512, 0'); a(f'v_add_u32 {xa1}, s15, {xa0}')
        a(f'global_load_dword {xp[4]}, {xa1}, s[16:17]'); a(f'global_load_dword {xp[6]}, {xa1}, s[16:17] offset:896')
        a('s_mov_b32 exec_hi, 0x00ffffff')
        a(f'global_load_dwordx4 {row}, {t3}, s[16:17]')
        a('s_mov_b32 exec_hi, -1')
        a('s_cmp_lt_u32 s4, 7'); a('s_cbranch_scc0 L_nocl')
        a('s_lshl_b32 s15, s10, 10')
        a(f'v_lshl_add_u32 {t0}, v0, 1, s15')
        for k in range(6): a(f'global_load_short_d16_hi {par[k]}, {t0}, s[{18+2*k}:{19+2*k}]')
        a('s_cmp_lt_u32 s6, 4'); a('s_cbranch_scc0 L_nowd')
        a('s_lshr_b32 s15, s10, 1'); a('s_lshl_b32 s15, s15, 4'); a('s_and_b32 s3, s10, 1')
        a('s_add_u32 s15, s15, s3'); a('s_mul_i32 s15, s15, 896')
        a(f'v_min_u32 {t1}, 223, v0'); a(f'v_lshl_add_u32 {t1}, {t1}, 2, s15')
        a(f'v_add_u32 {t2}, {4*896}, {t1}'); a(f'v_add_u32 {t0}, {8*896}, {t1}'); a(f'v_add_u32 {t3}, {12*896}, {t1}')
        for i, ad in enumerate([t1, t2, t0, t3]):
            a(f'global_load_dword {wd[i]}, {ad}, s[40:41]'); a(f'global_load_dword {wd[4+i]}, {ad}, s[40:41] offset:{2*896}')
        a('s_branch L_nocl')
        a('L_nowd:')
        a('s_bitcmp1_b32 s5, 0'); a('s_cselect_b32 s60, s38, s36'); a('s_cselect_b32 s61, s39, s37')
        a(f's_mov_b32 s62, {448*3584}'); a('s_mov_b32 s63, 0x20000')
        a('s_lshr_b32 s15, s5, 1'); a('s_lshl_b32 s3, s4, 4'); a('s_add_u32 s15, s15, s3'); a('s_lshl_b32 s15, s15, 5')
        a(f'v_bfe_u32 {t0}, v0, 2, 6'); a(f'v_mul_u32_u24 {t0}, {8*3584}, {t0}')
        a(f'v_and_b32 {t1}, 3, v0'); a(f'v_lshlrev_b32 {t1}, 3, {t1}'); a(f'v_add3_u32 {t0}, {t0}, {t1}, s15')
        for i in range(8):
            if i: a(f's_mov_b32 s15, {3584*i}')
            a(f'buffer_load_dwordx2 {wd[2*i:2*i+2]}, {t0}, s[60:63], {"s15" if i else "0"} offen')
        a('L_nocl:')
        v.free('ga0', 'ga1', 'xa1')
        a(f'v_mov_b32 {t0}, 0'); a(f'v_lshlrev_b32 {t1}, 2, {lane}'); a(f'ds_write_b32 {t1}, {t0} offset:{L_FL & 0xffff}' if L_FL < 65536 else f'v_add_u32 {t1}, {L_FL}, {t1}')
        if L_FL >= 65536: a(f'ds_write_b32 {t1}, {t0}')
        a(f'v_and_b32 {t1}, 1, {lane}'); a(f'v_mul_u32_u24 {t1}, {KVS}, {t1}'); a(f'v_add_u32 {t1}, {L_KV}, {t1}')
        a(f'ds_write_b32 {t1}, {t0}')
        ex = self.ex = v.alloc('ex', 9)
        a(f'v_and_b32 {t0}, 255, v0'); a(f'v_lshlrev_b32 {t0}, 3, {t0}'); a(f'v_sub_u32 {t0}, 2047, {t0}')
        a(f'v_cmp_lt_u32 vcc, 256, {t0}')
        a(f'v_lshrrev_b32 {t3}, 8, v0'); a(f'v_mul_u32_u24 {t3}, {KVS}, {t3}'); a(f'v_add_u32 {t3}, {L_KV+4}, {t3}')
        for m in range(9):
            a(f'v_subrev_u32 {ex[m]}, {m}, {t0}')
            a(f'v_cvt_f32_i32 {t1}, {ex[m]}')
            a(f'v_cvt_pk_bf16_f32 {t1}, {t1}, {t1}')
            a(f'v_lshrrev_b32 {t1}, 16, {t1}')
            a(f'v_subrev_u32 {t1}, 0x4280, {t1}')
            a(f'v_cndmask_b32 {ex[m]}, {ex[m]}, {t1}, vcc')
            a(f'v_lshl_add_u32 {ex[m]}, {ex[m]}, 2, {t3}')
        kr_src = self.kr_src = v.alloc('kr_src'); kr_dst = self.kr_dst = v.alloc('kr_dst'); kr_st = self.kr_st = v.alloc('kr_st')
        t4 = v.alloc('t4'); t5 = v.alloc('t5')
        a(f'v_cmp_le_u32 vcc, 192, v0')
        a(f'v_subrev_u32 {t0}, 192, v0'); a(f'v_cndmask_b32 {t0}, v0, {t0}, vcc')
        a(f'v_cndmask_b32 {t3}, 0, 1, vcc')
        a(f'v_lshrrev_b32 {t1}, 4, {t0}'); a(f'v_and_b32 {t2}, 15, {t0}')
        a(f'v_mul_u32_u24 {kr_src}, {KROW}, {t1}'); a(f'v_lshl_add_u32 {kr_src}, {t2}, 4, {kr_src}')
        a(f'v_lshl_add_u32 {kr_src}, {t3}, 10, {kr_src}')
        a(f'v_and_b32 {t4}, 3, {t1}'); a(f'v_lshrrev_b32 {t1}, 2, {t1}'); a(f'v_lshl_add_u32 {t4}, {t1}, 3, {t4}')
        a(f'v_lshrrev_b32 {t1}, 3, {t2}'); a(f'v_lshl_add_u32 {t4}, {t1}, 2, {t4}')
        a(f'v_and_b32 {t2}, 7, {t2}'); a(f'v_lshlrev_b32 {t2}, 2, {t2}')
        a(f'v_mov_b32 {kr_dst}, {t4}'); a(f'v_mov_b32 {kr_st}, 8')
        a(f'v_cmp_le_u32 vcc, 8, {t4}'); a(f'v_add_u32 {t1}, 248, {t4}')
        a(f'v_cndmask_b32 {kr_dst}, {kr_dst}, {t1}, vcc'); a(f'v_cndmask_b32 {kr_st}, {kr_st}, 4, vcc')
        a(f'v_cmp_le_u32 vcc, 12, {t4}'); a(f'v_and_b32 {t1}, 1, {t4}'); a(f'v_bfe_u32 {t5}, {t4}, 1, 1')
        a(f'v_lshl_add_u32 {t1}, {t5}, 6, {t1}'); a(f'v_add_u32 {t1}, 384, {t1}')
        a(f'v_cndmask_b32 {kr_dst}, {kr_dst}, {t1}, vcc'); a(f'v_cndmask_b32 {kr_st}, {kr_st}, 2, vcc')
        a(f'v_cmp_le_u32 vcc, 16, {t4}'); a(f'v_lshlrev_b32 {t1}, 5, {t4}')
        a(f'v_cndmask_b32 {kr_dst}, {kr_dst}, {t1}, vcc'); a(f'v_cndmask_b32 {kr_st}, {kr_st}, 1, vcc')
        a(f'v_mad_u32_u24 {kr_dst}, {kr_st}, {t2}, {kr_dst}')
        a(f'v_mul_u32_u24 {t3}, {KVS}, {t3}'); a(f'v_add_u32 {t3}, {L_KV+4}, {t3}')
        a(f'v_lshl_add_u32 {kr_dst}, {kr_dst}, 2, {t3}'); a(f'v_lshlrev_b32 {kr_st}, 2, {kr_st}')
        v.free('t4', 't5')
        a('s_mul_i32 s15, s2, 14336'); a(f's_add_u32 s15, s15, {WS_XT}'); a(f'v_lshl_add_u32 {xa0}, v0, 4, s15')
        a('s_waitcnt lgkmcnt(0)')
        a('s_add_u32 s7, s7, 1')
        for k in range(4): a(f'v_mov_b32 {xp[2*k+1]}, s7')
        a('s_cmp_lt_u32 s4, 7'); a('s_cbranch_scc0 L_w0')
        a('s_waitcnt vmcnt(14)'); a('s_branch L_wd')
        a('L_w0:'); a('s_waitcnt vmcnt(0)')
        a('L_wd:')
        self.stamp(1)
        a(f'global_store_dwordx4 {xa0}, {xp[0:4]}, s[50:51] sc1')
        a('s_cmp_lt_u32 s6, 6'); a('s_cselect_b32 s15, 8192, 0'); a(f'v_add_u32 {xa0}, s15, {xa0}')
        a(f'global_store_dwordx4 {xa0}, {xp[4:8]}, s[50:51] sc1')
        v.free('xp', 'xa0')
        a('s_cmp_lt_u32 s5, 21'); a('s_cbranch_scc0 L_nog1')
        acc = v.alloc('gacc', 4)
        for i in range(4):
            a(f'v_mul_f32 {t0}, 0xbfb8aa3b, {cs[i]}'); a(f'v_exp_f32 {t0}, {t0}'); a(f'v_add_f32 {t0}, 1.0, {t0}')
            a(f'v_rcp_f32 {t0}, {t0}'); a(f'v_mul_f32 {t0}, {t0}, {cs[i]}')
            a(f'v_cvt_pk_bf16_f32 {t0}, {t0}, {t0}'); a(f'v_and_b32 {cs[i]}, 0xffff0000, {t0}')
        for i in range(4):
            for k in range(2):
                a(f'v_lshlrev_b32 {t0}, 16, {wm[2*i+k]}'); a(f'v_and_b32 {t1}, 0xffff0000, {wm[2*i+k]}')
                if i == 0:
                    a(f'v_mul_f32 {acc[2*k]}, {cs[i]}, {t0}'); a(f'v_mul_f32 {acc[2*k+1]}, {cs[i]}, {t1}')
                else:
                    a(f'v_fmac_f32 {acc[2*k]}, {cs[i]}, {t0}'); a(f'v_fmac_f32 {acc[2*k+1]}, {cs[i]}, {t1}')
        for d in ['row_ror:4', 'row_ror:8']:
            for k in range(4): a(f'v_add_f32_dpp {acc[k]}, {acc[k]}, {acc[k]} {d} row_mask:0xf bank_mask:0xf')
        tt = [t0, t1, t2, t3]
        for sw in ['v_permlane16_swap_b32', 'v_permlane32_swap_b32']:
            for k in range(4): a(f'v_mov_b32 {tt[k]}, {acc[k]}')
            for k in range(4): a(f'{sw} {acc[k]}, {tt[k]}')
            for k in range(4): a(f'v_add_f32 {acc[k]}, {acc[k]}, {tt[k]}')
        a(f's_lshl_b32 s15, s6, 6'); a(f's_add_u32 s15, s15, {L_GS}')
        a(f'v_lshl_add_u32 {t0}, {lane}, 4, s15')
        a('s_mov_b64 exec, 15'); a(f'ds_write_b128 {t0}, {acc}'); a('s_mov_b64 exec, -1')
        v.free('gacc')
        a('L_nog1:')
        st = v.alloc('st', 4)
        a(f'v_mov_b32 {st[0]}, 0'); a(f'v_mov_b32 {st[2]}, 0')
        for k in range(4):
            a(f'v_dot2c_f32_bf16 {st[0]}, 0x3f803f80, {row[k]}'); a(f'v_dot2c_f32_bf16 {st[2]}, {row[k]}, {row[k]}')
        for d in ['row_shr:1 row_mask:0xf', 'row_shr:2 row_mask:0xf', 'row_shr:4 row_mask:0xf', 'row_shr:8 row_mask:0xf', 'row_bcast:15 row_mask:0xa', 'row_bcast:31 row_mask:0xc']:
            a(f'v_add_f32_dpp {st[0]}, {st[0]}, {st[0]} {d} bank_mask:0xf'); a(f'v_add_f32_dpp {st[2]}, {st[2]}, {st[2]} {d} bank_mask:0xf')
        inv = 0x3b124925
        a(f'v_mul_f32 {st[0]}, 0x{inv:x}, {st[0]}'); a(f'v_mul_f32 {st[2]}, 0x{inv:x}, {st[2]}')
        a(f'v_fma_f32 {st[2]}, -{st[0]}, {st[0]}, {st[2]}'); a(f'v_max_f32 {st[2]}, 0, {st[2]}')
        a(f'v_cvt_pk_bf16_f32 {st[2]}, {st[2]}, {st[2]}'); a(f'v_and_b32 {st[2]}, 0xffff0000, {st[2]}')
        a(f'v_add_f32 {st[2]}, 0x3727c5ac, {st[2]}')
        a(f'v_cvt_pk_bf16_f32 {st[2]}, {st[2]}, {st[2]}'); a(f'v_and_b32 {st[2]}, 0xffff0000, {st[2]}')
        a(f'v_sqrt_f32 {st[2]}, {st[2]}'); a(f'v_mov_b32 {st[1]}, s7')
        a(f'v_cvt_pk_bf16_f32 {st[0]}, {st[0]}, {st[2]}')
        a(f's_add_u32 {strow}, {strow}, {WS_STATS}'); a(f'v_mov_b32 {t0}, {strow}')
        a('s_mov_b32 exec_lo, 0'); a('s_mov_b32 exec_hi, 0x80000000')
        a(f'global_store_dwordx2 {t0}, {st[0:2]}, s[50:51] sc1')
        a('s_mov_b64 exec, -1')
        s.free('strow')
        v.free('cs', 'wm', 'row', 'clr', 'dummy')
        a('s_cmp_lt_u32 s4, 7'); a('s_cbranch_scc0 L_nowd2')
        a('s_cmp_lt_u32 s6, 4'); a('s_cbranch_scc0 L_nowd2')
        o = v.alloc('wdo', 8)
        a('s_mov_b32 s15, 0x05040100'); a('s_mov_b32 s3, 0x07060302')
        a('s_waitcnt vmcnt(3)')
        for m in range(4):
            a(f'v_perm_b32 {o[m]}, {wd[2*m+1]}, {wd[2*m]}, s15'); a(f'v_perm_b32 {o[4+m]}, {wd[2*m+1]}, {wd[2*m]}, s3')
        a('s_mul_i32 s15, s10, 7168'); a(f's_add_u32 s15, s15, {WS_WD}')
        a(f'v_lshl_add_u32 {t0}, v0, 4, s15')
        a(f'v_cmp_gt_u32 vcc, 224, v0'); a('s_and_saveexec_b64 s[8:9], vcc')
        a(f'global_store_dwordx4 {t0}, {o[0:4]}, s[50:51] sc1'); a(f'global_store_dwordx4 {t0}, {o[4:8]}, s[50:51] offset:3584 sc1')
        a('s_mov_b64 exec, -1')
        v.free('wdo')
        a('L_nowd2:')
        a('s_waitcnt lgkmcnt(0)'); a('s_barrier')
        a('s_cmp_lt_u32 s5, 21'); a('s_cbranch_scc0 L_nog2')
        a('s_cmp_eq_u32 s6, 0'); a('s_cbranch_scc0 L_nog2')
        g = v.alloc('g8', 8)
        a(f'v_lshlrev_b32 {t0}, 2, {lane}'); a(f'v_add_u32 {t0}, {L_GS}, {t0}')
        a('s_mov_b64 exec, 0xffff')
        for w in range(8): a(f'ds_read_b32 {g[w]}, {t0} offset:{64*w}')
        a('s_waitcnt lgkmcnt(0)')
        for w in (1, 3, 5, 7): a(f'v_add_f32 {g[w-1]}, {g[w-1]}, {g[w]}')
        a(f'v_add_f32 {g[0]}, {g[0]}, {g[2]}'); a(f'v_add_f32 {g[4]}, {g[4]}, {g[6]}'); a(f'v_add_f32 {g[0]}, {g[0]}, {g[4]}')
        a(f'v_cvt_pk_bf16_f32 {g[0]}, {g[0]}, {g[0]}'); a(f'v_and_b32 {g[0]}, 0xffff0000, {g[0]}')
        a('s_sub_u32 s15, s11, 28'); a('s_cmp_lt_u32 s15, 28'); a('s_cbranch_scc1 L_pl1')
        a('s_sub_u32 s15, s11, 112'); a('s_cmp_lt_u32 s15, 28'); a('s_cbranch_scc0 L_np1')
        a('L_pl1:')
        a(f'v_add_f32 {g[0]}, 1.0, {g[0]}'); a(f'v_cvt_pk_bf16_f32 {g[0]}, {g[0]}, {g[0]}'); a(f'v_and_b32 {g[0]}, 0xffff0000, {g[0]}')
        a('L_np1:')
        a(f'v_mov_b32 {g[1]}, s7'); a('s_lshl_b32 s15, s11, 7'); a(f's_add_u32 s15, s15, {WS_MOD}')
        a(f'v_lshl_add_u32 {t0}, {lane}, 3, s15')
        a(f'global_store_dwordx2 {t0}, {g[0:2]}, s[50:51] sc1')
        a('s_mov_b64 exec, -1')
        v.free('g8')
        a('L_nog2:')
        v.free('st')
        self.stamp(2)
        self.par = par; self.t = [t0, t1, t2, t3]

    def kgen(self):
        a = self.a; v = self.v; par = self.par; t0, t1, t2, t3 = self.t; lane = self.lane
        a('s_cmp_lt_u32 s4, 7'); a('s_cbranch_scc0 L_nokgen')
        a('s_cmp_lt_u32 s6, 4'); a('s_lshl_b32 s15, s13, 16'); a('s_and_b32 s3, s13, 0xffff0000')
        a('s_cmp_lt_u32 s6, 4'); a('s_cselect_b32 s15, s15, s3')
        dt = v.alloc('dt')
        a('s_cbranch_scc1 L_parok'); a('s_waitcnt vmcnt(11)'); a('L_parok:')
        a(f'v_mov_b32 {t0}, s15'); a(f'v_mul_f32 {t1}, 0x{LOG2E:x}, {t0}')
        a(f's_mov_b32 s3, 0x{LOG2E:x}'); a(f'v_fma_f32 {t2}, {t0}, s3, -{t1}')
        a(f'v_fmac_f32 {t2}, 0x32a57060, {t0}')
        a(f'v_exp_f32 {t1}, {t1}'); a(f'v_mul_f32 {t2}, 0x3f317218, {t2}'); a(f'v_fmac_f32 {t1}, {t1}, {t2}')
        a(f'v_cvt_pk_bf16_f32 {dt}, {t1}, {t1}'); a(f'v_and_b32 {dt}, 0xffff0000, {dt}')
        ar, ai, br, bi, cr, ci = [par[k] for k in range(6)]
        a(f'v_mul_f32 {ar}, {dt}, {ar}'); a(f'v_mul_f32 {ai}, {dt}, {ai}'); a(f'v_mul_f32 {br}, {dt}, {br}'); a(f'v_mul_f32 {bi}, {dt}, {bi}')
        a(f'v_mul_f32 {ar}, 0x{LOG2E:x}, {ar}'); a(f'v_mul_f32 {ai}, 0x{INV2PI:x}, {ai}')
        k = v.alloc('k', 2); z1 = v.alloc('z1', 2); z2 = v.alloc('z2', 2); z4 = v.alloc('z4', 2); z8 = v.alloc('z8', 2); zb = v.alloc('zb', 2)
        T = v.alloc('T', 2); T2 = v.alloc('T2', 2); U = v.alloc('U', 2); U2 = v.alloc('U2', 2); V = v.alloc('V', 2)
        a(f'v_mul_f32 {k[0]}, {cr}, {br}'); a(f'v_mul_f32 {k[1]}, {cr}, {bi}')
        a(f'v_fma_f32 {k[0]}, -{ci}, {bi}, {k[0]}'); a(f'v_fmac_f32 {k[1]}, {ci}, {br}')
        for z, mul in ((z1, None), (zb, 0x43800000)):
            if mul is None:
                a(f'v_exp_f32 {t0}, {ar}'); a(f'v_fract_f32 {t1}, {ai}')
            else:
                a(f'v_mul_f32 {t0}, 0x{mul:x}, {ar}'); a(f'v_mul_f32 {t1}, 0x{mul:x}, {ai}')
                a(f'v_exp_f32 {t0}, {t0}'); a(f'v_fract_f32 {t1}, {t1}')
            a(f'v_cos_f32 {z[0]}, {t1}'); a(f'v_sin_f32 {z[1]}, {t1}')
            a(f'v_mul_f32 {z[0]}, {t0}, {z[0]}'); a(f'v_mul_f32 {z[1]}, {t0}, {z[1]}')
        self.cmul(z2, z1, z1, T); self.cmul(z4, z2, z2, T); self.cmul(z8, z4, z4, T)
        a('s_lshl_b32 s15, s6, 8'); a('s_mov_b32 m0, s15')
        pk = [t0, t1, t2, t3]; st = {'n': 0, 'hi': False}
        def put(row, X, neg):
            p = pk[st['n'] % 4]; st['n'] += 1
            a(f'v_cvt_pk_bf16_f32 {p}, {X[0]}, {"-" if neg else ""}{X[1]}')
            if row >= 30 and not st['hi']:
                a(f's_add_u32 m0, s15, {30*KROW}'); st['hi'] = True
            assert (row >= 30) == st['hi']
            a(f'ds_write_addtid_b32 {p} offset:{(row - (30 if row >= 30 else 0))*KROW}')
        coarse = [(0, None, None, None)] + [(i, U, (k if i == 1 else U), z1) for i in range(1, 8)]
        coarse += [(8, U, k, zb), (12, U2, U, zb), (9, U, U, z2), (10, U, U, z2), (11, U, U, z2), (13, U, U2, z4), (15, U, U, zb),
                   (14, U2, U2, zb), (16, U2, U2, zb), (17, U2, U2, zb), (18, U2, U2, zb), (19, U2, U2, zb), (20, U2, U2, zb)]
        a(f'v_mov_b32 {t0}, 0x3f80'); a(f'ds_write_addtid_b32 {t0} offset:{21*KROW}'); st['n'] = 1
        put(22, z8, False)
        fine = list(range(2, 32)); fi = 0
        for (row, O, X, Z) in coarse:
            if O is None: put(0, k, True)
            else:
                self.cmul(O, X, Z, T); put(row, O, True)
            if fi < 7:
                j = fine[fi]; fi += 1
                self.cmul(V, z8 if j == 2 else V, z8, T2); put(21 + j, V, False)
        z16 = z1; self.cmul(z16, z8, z8, T)
        self.cmul(U, V, z8, T2); put(21 + 9, U, False)
        for j in range(10, 32, 2):
            self.cmul(V, V, z16, T); put(21 + j, V, False)
            self.cmul(U, U, z16, T2); put(21 + j + 1, U, False)
        v.free('dt', 'k', 'z1', 'z2', 'z4', 'z8', 'zb', 'T', 'T2', 'U', 'U2', 'V', 'par')
        fa = v.alloc('fa', 32, 4); fb = v.alloc('fb', 32, 4); acc = v.alloc('kacc', 16, 4)
        a(f'v_and_b32 {t0}, 31, {lane}'); a(f'v_mul_u32_u24 {t0}, {KROW}, {t0}'); a(f'v_lshrrev_b32 {t1}, 5, {lane}')
        a(f'v_lshlrev_b32 {t1}, 4, {t1}'); a(f'v_add3_u32 {t0}, {t0}, {t1}, s15')
        for ks in range(8):
            a(f'ds_read_b128 {fa[4*ks:4*ks+4]}, {t0} offset:{32*ks}'); a(f'ds_read_b128 {fb[4*ks:4*ks+4]}, {t0} offset:{21*KROW+32*ks}')
        for ks in range(8):
            a(f's_waitcnt lgkmcnt({14-2*ks})')
            a(f'v_mfma_f32_32x32x16_bf16 {acc}, {fa[4*ks:4*ks+4]}, {fb[4*ks:4*ks+4]}, {acc if ks else 0}')
        a('s_mov_b32 m0, s15')
        for r in range(12): a(f'ds_write_addtid_b32 {acc[r]} offset:{r*KROW}')
        v.free('fa', 'fb', 'kacc')
        a('L_nokgen:')
        a('s_waitcnt lgkmcnt(0)'); a('s_barrier')
        self.stamp(3)
        a('s_cmp_lt_u32 s4, 7'); a('s_cbranch_scc0 L_nokr')
        a('s_cmp_lt_u32 s6, 6'); a('s_cbranch_scc0 L_nokr')
        p = v.alloc('kp', 16, 4)
        for w in range(4): a(f'ds_read_b128 {p[4*w:4*w+4]}, {self.kr_src} offset:{256*w}')
        a(f'v_add_u32 {t1}, {self.kr_dst}, {self.kr_st}'); a(f'v_add_u32 {t2}, {t1}, {self.kr_st}'); a(f'v_add_u32 {t3}, {t2}, {self.kr_st}')
        a('s_waitcnt lgkmcnt(0)')
        for e in range(4):
            a(f'v_add_f32 {p[e]}, {p[e]}, {p[4+e]}'); a(f'v_add_f32 {p[8+e]}, {p[8+e]}, {p[12+e]}')
        for e, ad in enumerate([self.kr_dst, t1, t2, t3]):
            a(f'v_add_f32 {p[e]}, {p[e]}, {p[8+e]}'); a(f'ds_write_b32 {ad}, {p[e]}')
        v.free('kp')
        a('L_nokr:')
        v.free('kr_src', 'kr_dst', 'kr_st')
        xt = self.xt = v.alloc('xt', 8, 4); sg = self.sg = v.alloc('sg', 8, 4); ms = self.ms = v.alloc('ms', 12, 4)
        xa = self.xa = v.alloc('xa', 2); sa_ = self.sa_ = v.alloc('sa_'); ma = self.ma = v.alloc('ma')
        a(f'v_lshrrev_b32 {t0}, 2, v0'); a(f'v_mul_u32_u24 {xa[0]}, 14336, {t0}'); a(f'v_and_b32 {t0}, 3, v0'); a(f'v_lshl_add_u32 {xa[0]}, {t0}, 4, {xa[0]}')
        a('s_lshl_b32 s15, s10, 6'); a(f's_add_u32 s15, s15, {WS_XT}'); a(f'v_add_u32 {xa[0]}, s15, {xa[0]}'); a(f'v_add_u32 {xa[1]}, {128*14336}, {xa[0]}')
        a(f'v_lshlrev_b32 {sa_}, 4, v0'); a(f'v_add_u32 {sa_}, {WS_STATS}, {sa_}')
        a('s_lshl_b32 s15, s10, 4'); a(f's_add_u32 s15, s15, {WS_MOD}'); a(f'v_mov_b32 {ma}, s15')
        a('s_cmp_lt_u32 s4, 7'); a('s_cbranch_scc0 L_nomod')
        a('s_cmp_lt_u32 s6, 4'); a('s_cbranch_scc1 L_nomod')
        m = v.alloc('mg', 8, 4)
        a(f'v_and_b32 {t0}, 255, v0'); a(f'v_lshlrev_b32 {t0}, 4, {t0}'); a(f'v_add_u32 {t1}, 4096, {t0}'); a(f'v_min_u32 {t1}, {7168-16}, {t1}')
        a(f's_add_u32 s8, s50, {WS_MOD + 3*448*8}'); a('s_addc_u32 s9, s51, 0')
        def ld():
            for i, ad in enumerate([t0, t1]): a(f'global_load_dwordx4 {m[4*i:4*i+4]}, {ad}, s[8:9] sc1')
        def ck():
            for i in range(4): a(f'v_xor_b32 {m[2*i+1]}, s7, {m[2*i+1]}')
            a(f'v_or3_b32 {m[1]}, {m[1]}, {m[3]}, {m[5]}'); a(f'v_or_b32 {m[1]}, {m[1]}, {m[7]}'); a(f'v_cmp_ne_u32 vcc, 0, {m[1]}')
        self.poll(ld, ck)
        for i, ad in enumerate([t0, t1]):
            a(f'v_lshrrev_b32 {ad}, 1, {ad}'); a(f'v_add_u32 {ad}, {L_MODV}, {ad}')
            a(f'ds_write2_b32 {ad}, {m[4*i]}, {m[4*i+2]} offset0:0 offset1:1')
        v.free('mg')
        a('L_nomod:')
        self.p4loads()
        a('s_waitcnt lgkmcnt(0)'); a('s_barrier')
        self.stamp(4)

    def p4loads(self):
        a = self.a; xt, sg, ms, xa, sa_, ma = self.xt, self.sg, self.ms, self.xa, self.sa_, self.ma
        for u in range(2): a(f'global_load_dwordx4 {xt[4*u:4*u+4]}, {xa[u]}, s[50:51] sc1')
        a(f'global_load_dwordx4 {sg[0:4]}, {sa_}, s[50:51] sc1'); a(f'v_add_u32 {sa_}, 8192, {sa_}')
        a(f'global_load_dwordx4 {sg[4:8]}, {sa_}, s[50:51] sc1'); a(f'v_subrev_u32 {sa_}, 8192, {sa_}')
        a(f'global_load_dwordx4 {ms[0:4]}, {ma}, s[50:51] sc1'); a(f'global_load_dwordx4 {ms[4:8]}, {ma}, s[50:51] offset:3584 sc1')
        a(f'v_add_u32 {ma}, 7168, {ma}'); a(f'global_load_dwordx4 {ms[8:12]}, {ma}, s[50:51] sc1'); a(f'v_subrev_u32 {ma}, 7168, {ma}')

    def phase4(self):
        a = self.a; v = self.v; t0, t1, t2, t3 = self.t; lane = self.lane; ex = self.ex
        xt, sg, ms = self.xt, self.sg, self.ms
        a('s_cmp_lt_u32 s4, 7'); a('s_cbranch_scc0 L_noexp')
        kv = v.alloc('kv', 9); o = v.alloc('eo', 8, 4)
        for m in range(9): a(f'ds_read_b32 {kv[m]}, {ex[m]}')
        a(f'v_mov_b32 {t2}, 0'); a(f'v_mov_b32 {t3}, 0')
        a('s_cmp_eq_u32 s6, 7'); a('s_cbranch_scc0 L_nz1')
        a(f'v_lshrrev_b32 {t1}, 2, {lane}'); a(f'v_and_b32 {t1}, 3, {t1}'); a(f'v_mul_u32_u24 {t1}, 4160, {t1}')
        a(f'v_and_b32 {o[0]}, 3, {lane}'); a(f'v_lshl_add_u32 {t1}, {o[0]}, 3, {t1}')
        a(f'ds_write_b64 {t1}, {R("v", t2.i, 2)} offset:{L_KP+4096}')
        a('L_nz1:')
        a('s_cmp_ge_u32 s6, 6'); a('s_cbranch_scc0 L_nz2')
        a('s_sub_u32 s15, s6, 6'); a('s_mul_i32 s15, s15, 4576'); a(f'v_min_u32 {t1}, 59, {lane}'); a(f'v_lshl_add_u32 {t1}, {t1}, 3, s15')
        a(f'ds_write_b64 {t1}, {R("v", t2.i, 2)} offset:{L_H}')
        a('L_nz2:')
        a('s_waitcnt lgkmcnt(0)')
        for m in range(4):
            a(f'v_cvt_pk_bf16_f32 {o[m]}, {kv[2*m]}, {kv[2*m+1]}'); a(f'v_cvt_pk_bf16_f32 {o[4+m]}, {kv[2*m+1]}, {kv[2*m+2]}')
        a(f'v_lshrrev_b32 {t1}, 8, v0'); a(f'v_mul_u32_u24 {t1}, 8320, {t1}'); a(f'v_and_b32 {t2}, 255, v0'); a(f'v_lshl_add_u32 {t1}, {t2}, 4, {t1}')
        a(f'ds_write_b128 {t1}, {o[0:4]} offset:{L_KP}'); a(f'ds_write_b128 {t1}, {o[4:8]} offset:{L_KP+4160}')
        v.free('kv', 'eo')
        a('L_noexp:')
        v.free('ex')
        def ld():
            L = a.label('skip')
            a(f's_cmp_eq_u32 {R("s", self.s.names["spin"][0], 1)}, 0'); a(f's_cbranch_scc1 {L}')
            self.p4loads()
            a(f'{L}:')
        def ck():
            tags = [xt[2*i+1] for i in range(4)] + [sg[2*i+1] for i in range(4)] + [ms[2*i+1] for i in range(6)]
            for r in tags: a(f'v_xor_b32 {r}, s7, {r}')
            acc = tags[0]
            for i in range(1, 13, 2): a(f'v_or3_b32 {acc}, {acc}, {tags[i]}, {tags[i+1]}')
            a(f'v_or_b32 {acc}, {acc}, {tags[13]}'); a(f'v_cmp_ne_u32 vcc, 0, {acc}')
        self.poll(ld, ck)
        self.stamp(5)
        a('s_cmp_lt_u32 s4, 7'); a('s_cbranch_scc0 L_noh')
        h = v.alloc('h', 8, 2)
        for i in range(4):
            x = xt[2*i]; g = sg[2*i]; mu = sg[2*i+1]
            a(f'v_lshlrev_b32 {mu}, 16, {g}'); a(f'v_and_b32 {g}, 0xffff0000, {g}'); a(f'v_rcp_f32 {g}, {g}')
            a(f'v_lshlrev_b32 {h[i]}, 16, {x}'); a(f'v_and_b32 {h[4+i]}, 0xffff0000, {x}')
            a(f'v_sub_f32 {h[i]}, {h[i]}, {mu}'); a(f'v_sub_f32 {h[4+i]}, {h[4+i]}, {mu}')
            a(f'v_mul_f32 {h[i]}, {h[i]}, {g}'); a(f'v_mul_f32 {h[4+i]}, {h[4+i]}, {g}')
            a(f'v_fma_f32 {h[i]}, {h[i]}, {ms[4]}, {ms[0]}'); a(f'v_fma_f32 {h[4+i]}, {h[4+i]}, {ms[6]}, {ms[2]}')
        a(f'v_lshlrev_b32 {t1}, 2, v0'); a(f'v_lshlrev_b32 {t2}, 3, v0')
        for u in range(2):
            a(f'v_cvt_pk_bf16_f32 {h[2*u]}, {h[2*u]}, {h[2*u+1]}'); a(f'v_cvt_pk_bf16_f32 {h[4+2*u]}, {h[4+2*u]}, {h[4+2*u+1]}')
            a(f'ds_write_b32 {t1}, {h[2*u]} offset:{L_H+480+2048*u}'); a(f'ds_write_b32 {t1}, {h[4+2*u]} offset:{L_H+4576+480+2048*u}')
            a(f'v_mov_b32 {xt[4*u+1]}, {xt[4*u+2]}')
            a(f'ds_write_b64 {t2}, {xt[4*u:4*u+2]} offset:{L_XR+4096*u}')
        a(f'v_readfirstlane_b32 s12, {ms[8]}'); a(f'v_readfirstlane_b32 s13, {ms[10]}')
        v.free('h')
        a('L_noh:')
        v.free('sg', 'xt', 'ms', 'xa', 'sa_', 'ma')
        a('s_waitcnt vmcnt(0) lgkmcnt(0)'); a('s_barrier')
        self.stamp(6)

    def conv(self):
        a = self.a; v = self.v; t0, t1, t2, t3 = self.t; lane = self.lane
        snap = v.snapshot()
        v.free('wd')
        acc = v.alloc('cacc', 32, 4); FA = [v.alloc('fa0', 32, 4), v.alloc('fa1', 32, 4)]; FB = [v.alloc('fb0', 32, 4), v.alloc('fb1', 32, 4)]
        aa = v.alloc('aaddr', 4); ba = v.alloc('baddr')
        a('s_lshr_b32 s15, s6, 1'); a('s_and_b32 s3, s6, 1')
        a(f'v_and_b32 {t0}, 15, {lane}'); a(f'v_lshrrev_b32 {t1}, 4, {lane}')
        a(f'v_lshrrev_b32 {t2}, 1, {t0}'); a(f'v_lshlrev_b32 {t3}, 2, {t1}'); a(f'v_sub_u32 {t2}, {t3}, {t2}'); a(f'v_lshlrev_b32 {t2}, 2, {t2}')
        a(f'v_and_b32 {t3}, 1, {t0}'); a(f'v_mul_u32_u24 {t3}, 4160, {t3}'); a(f'v_sub_u32 {t2}, {t2}, {t3}')
        a('s_mul_i32 s8, s15, 8320'); a('s_lshl_b32 s9, s3, 8'); a('s_sub_u32 s8, s8, s9')
        a(f's_add_u32 s8, s8, {L_KP + 4160 + (1015 - 128)*4}')
        a(f'v_add_u32 {aa[0]}, s8, {t2}')
        for i in range(1, 4): a(f'v_subrev_u32 {aa[i]}, {1024*i}, {aa[0]}')
        a(f'v_lshlrev_b32 {t2}, 5, {t0}'); a(f'v_lshl_add_u32 {t2}, {t1}, 4, {t2}')
        a('s_mul_i32 s8, s15, 4576'); a('s_sub_u32 s8, s8, s9'); a(f's_add_u32 s8, s8, {L_H + 448 - 192}')
        a(f'v_add_u32 {ba}, s8, {t2}')
        def loads(it, buf):
            out = []
            for aidx in range(8):
                base = aa[aidx // 2]; off = (128 if aidx % 2 == 0 else 0) + 48 - 16*it
                out.append(f'ds_read2_b32 {FA[buf][4*aidx:4*aidx+2]}, {base} offset0:{off} offset1:{off+1}')
                out.append(f'ds_read2_b32 {FA[buf][4*aidx+2:4*aidx+4]}, {base} offset0:{off+2} offset1:{off+3}')
                out.append(f'ds_read_b128 {FB[buf][4*aidx:4*aidx+4]}, {ba} offset:{512*aidx + 192 - 64*it}')
            return out
        for i in range(4): a(f'v_subrev_u32 {aa[i]}, 192, {aa[i]}')
        for x in loads(0, 0): a(x)
        for it in range(4):
            buf = it & 1
            nxt = loads(it + 1, buf ^ 1) if it < 3 else []
            a('s_waitcnt lgkmcnt(0)')
            n = 0
            for aidx in range(8):
                for b in range(8 - aidx):
                    c = aidx + b
                    first = (it == 0 and aidx == 0)
                    a(f'v_mfma_f32_16x16x32_bf16 {acc[4*c:4*c+4]}, {FA[buf][4*aidx:4*aidx+4]}, {FB[buf][4*b:4*b+4]}, {0 if first else acc[4*c:4*c+4]}')
                    if n < len(nxt): a(nxt[n]); n += 1
            assert n == len(nxt)
        v.free('fa0', 'fa1', 'fb0', 'fb1', 'aaddr', 'baddr')
        self.stamp(7)
        a(f's_lshl_b32 s8, s6, 13'); a(f'v_lshl_add_u32 {t2}, {lane}, 4, s8')
        for c in range(8): a(f'ds_write_b128 {t2}, {acc[4*c:4*c+4]} offset:{L_EX + 1024*c}')
        a(f's_lshl_b32 s8, s6, 2'); a(f's_add_u32 s8, s8, {L_FL}'); a(f'v_mov_b32 {t2}, s8'); a(f'v_mov_b32 {t3}, 1'); a(f'ds_write_b32 {t2}, {t3}')
        v.free('cacc')
        xr = v.alloc('xr', 8, 4); hr = v.alloc('hr', 8, 2); y = v.alloc('y', 32, 4); fl = v.alloc('fl', 4, 4); ta = v.alloc('ta')
        a(f'v_lshlrev_b32 {ta}, 4, {t0}'); a(f'v_lshl_add_u32 {ta}, {t1}, 2, {ta}'); a('s_lshl_b32 s8, s6, 9'); a(f'v_add_u32 {ta}, s8, {ta}')
        a(f'v_lshlrev_b32 {t2}, 1, {ta}'); a(f'v_lshlrev_b32 {ta}, 2, {ta}')
        for u in range(2):
            a(f'ds_read_b128 {xr[4*u:4*u+4]}, {ta} offset:{L_XR + 1024*u}')
            a(f'ds_read_b64 {hr[4*u:4*u+2]}, {t2} offset:{L_H + 480 + 512*u}'); a(f'ds_read_b64 {hr[4*u+2:4*u+4]}, {t2} offset:{L_H + 4576 + 480 + 512*u}')
        self.ldsflag_wait(L_FL, fl, t3)
        a(f's_lshl_b32 s8, s6, 11'); a(f'v_lshl_add_u32 {t2}, {lane}, 4, s8')
        for u in range(2):
            for w in range(4): a(f'ds_read_b128 {y[16*u+4*w:16*u+4*w+4]}, {t2} offset:{L_EX + 8192*w + 1024*u}')
        a('s_lshl_b32 s8, s14, 16'); a('s_and_b32 s9, s14, 0xffff0000')
        a(f's_lshl_b32 s15, s10, 13'); a(f's_add_u32 s15, s15, {WS_X1}'); a(f'v_add_u32 {ta}, s15, {ta}')
        for u in range(2):
            a(f's_waitcnt lgkmcnt({4 if u == 0 else 0})')
            Y = y[16*u:16*u+16]
            for e in range(4):
                a(f'v_add_f32 {Y[e]}, {Y[e]}, {Y[4+e]}'); a(f'v_add_f32 {Y[8+e]}, {Y[8+e]}, {Y[12+e]}')
            for e in range(4):
                hh0 = hr[4*u + e//2]; hh1 = hr[4*u + 2 + e//2]
                if e % 2 == 0:
                    a(f'v_lshlrev_b32 {Y[4+e]}, 16, {hh0}'); a(f'v_lshlrev_b32 {Y[12+e]}, 16, {hh1}')
                else:
                    a(f'v_and_b32 {Y[4+e]}, 0xffff0000, {hh0}'); a(f'v_and_b32 {Y[12+e]}, 0xffff0000, {hh1}')
                a(f'v_fmac_f32 {Y[e]}, s8, {Y[4+e]}'); a(f'v_fmac_f32 {Y[8+e]}, s9, {Y[12+e]}')
                a(f'v_lshlrev_b32 {Y[4+e]}, 16, {xr[4*u+e]}'); a(f'v_and_b32 {Y[12+e]}, 0xffff0000, {xr[4*u+e]}')
                a(f'v_fmac_f32 {Y[4+e]}, s12, {Y[e]}'); a(f'v_fmac_f32 {Y[12+e]}, s13, {Y[8+e]}')
            for e in range(4): a(f'v_cvt_pk_bf16_f32 {Y[e]}, {Y[4+e]}, {Y[12+e]}')
            for e in range(4): a(f'v_min_u32 {Y[e]}, 0xfffffffe, {Y[e]}')
            a(f'global_store_dwordx4 {ta}, {Y[0:4]}, s[50:51] offset:{1024*u} sc1')
        self.stamp(8)
        v.restore(snap)

    def wprep(self):
        a = self.a; v = self.v; t0, t1, t2, t3 = self.t; lane = self.lane; w = self.wrow
        snap = v.snapshot()
        cb = v.alloc('cb', 8, 4); sb = v.alloc('sb', 8, 4); f = v.alloc('wf', 32, 4); o = v.alloc('wo', 16, 4); c12 = v.alloc('c12', 8, 4)
        a(f'v_bfe_u32 {t0}, v0, 2, 6'); a(f'v_min_u32 {t1}, 55, {t0}'); a(f'v_lshlrev_b32 {t1}, 5, {t1}'); a(f'v_add_u32 {t1}, {L_MODV}, {t1}')
        a(f'ds_read_b128 {cb[0:4]}, {t1} offset:{448*4}'); a(f'ds_read_b128 {cb[4:8]}, {t1} offset:{448*4+16}')
        a(f'ds_read_b128 {sb[0:4]}, {t1}'); a(f'ds_read_b128 {sb[4:8]}, {t1} offset:16')
        for i in range(8):
            for k in range(2):
                a(f'v_lshlrev_b32 {f[8*(2*k)+i]}, 16, {w[2*i+k]}'); a(f'v_and_b32 {f[8*(2*k+1)+i]}, 0xffff0000, {w[2*i+k]}')
        a('s_lshr_b32 s15, s5, 1'); a('s_lshl_b32 s3, s4, 4'); a('s_add_u32 s60, s15, s3')
        a(f's_mul_i32 s15, s60, {SLOT}'); a('s_and_b32 s61, s5, 1'); a('s_mul_i32 s3, s61, 14592'); a('s_add_u32 s15, s15, s3'); a(f's_add_u32 s15, s15, {WS_WP}')
        a(f'v_and_b32 {t2}, 255, v0'); a(f'v_lshl_add_u32 {t2}, {t2}, 4, s15'); a(f'v_add_u32 {t3}, {2*3648}, {t2}')
        a('s_waitcnt lgkmcnt(0)')
        for c in range(4):
            for m in range(4):
                a(f'v_mul_f32 {c12[0]}, {cb[2*m]}, {f[8*c+2*m]}'); a(f'v_mul_f32 {c12[1]}, {cb[2*m+1]}, {f[8*c+2*m+1]}')
                a(f'v_cvt_pk_bf16_f32 {o[4*c+m]}, {c12[0]}, {c12[1]}')
        a(f'v_cmp_gt_u32 vcc, 56, {t0}'); a('s_and_saveexec_b64 s[8:9], vcc')
        for c in range(4): a(f'global_store_dwordx4 {t2 if c < 2 else t3}, {o[4*c:4*c+4]}, s[50:51] offset:{3648*(c&1)} sc1')
        a('s_mov_b64 exec, -1')
        for c in range(4):
            a(f'v_mov_b32 {c12[c]}, 0'); a(f'v_mul_f32 {c12[4+c]}, {sb[0]}, {f[8*c]}')
        for m in range(4):
            for c in range(4): a(f'v_dot2c_f32_bf16 {c12[c]}, 0x3f803f80, {o[4*c+m]}')
        for i in range(1, 8):
            for c in range(4): a(f'v_fmac_f32 {c12[4+c]}, {sb[i]}, {f[8*c+i]}')
        for d in ['row_ror:4', 'row_ror:8']:
            for k in range(8): a(f'v_add_f32_dpp {c12[k]}, {c12[k]}, {c12[k]} {d} row_mask:0xf bank_mask:0xf')
        for sw in ['v_permlane16_swap_b32', 'v_permlane32_swap_b32']:
            for k in range(8): a(f'v_mov_b32 {f[k]}, {c12[k]}')
            for k in range(8): a(f'{sw} {c12[k]}, {f[k]}')
            for k in range(8): a(f'v_add_f32 {c12[k]}, {c12[k]}, {f[k]}')
        a('s_sub_u32 s15, s6, 4'); a('s_lshl_b32 s3, s15, 7'); a(f's_add_u32 s3, s3, {L_CS}'); a(f'v_lshl_add_u32 {t1}, {lane}, 4, s3')
        a('s_mov_b64 exec, 15'); a(f'ds_write_b128 {t1}, {c12[0:4]}'); a(f'ds_write_b128 {t1}, {c12[4:8]} offset:64'); a('s_mov_b64 exec, -1')
        a(f's_lshl_b32 s3, s15, 2'); a(f's_add_u32 s3, s3, {L_FL+64}'); a(f'v_mov_b32 {t1}, s3'); a(f'v_mov_b32 {t3}, 1'); a(f'ds_write_b32 {t1}, {t3}')
        a('s_cmp_eq_u32 s6, 4'); a('s_cbranch_scc0 L_noc12')
        self.ldsflag_wait(L_FL + 64, f[0:4], t1)
        a(f'v_and_b32 {t1}, 31, {lane}'); a(f'v_and_b32 {t3}, 3, {lane}'); a(f'v_lshlrev_b32 {t3}, 2, {t3}'); a(f'v_bfe_u32 {t2}, {lane}, 2, 2'); a(f'v_add_u32 {t3}, {t3}, {t2}')
        a(f'v_and_b32 {t2}, 16, {lane}'); a(f'v_add_u32 {t3}, {t3}, {t2}'); a(f'v_lshlrev_b32 {t3}, 2, {t3}'); a(f'v_add_u32 {t3}, {L_CS}, {t3}'); a(f'v_lshlrev_b32 {t1}, 2, {t1}')
        for k in range(4): a(f'ds_read_b32 {f[k]}, {t3} offset:{128*k}')
        a('s_lshl_b32 s15, s60, 1'); a('s_add_u32 s15, s15, s61'); a('s_lshl_b32 s15, s15, 7'); a(f's_add_u32 s15, s15, {WS_C12}'); a(f'v_add_u32 {t1}, s15, {t1}')
        a('s_waitcnt lgkmcnt(0)')
        a(f'v_add_f32 {f[0]}, {f[0]}, {f[1]}'); a(f'v_add_f32 {f[2]}, {f[2]}, {f[3]}'); a(f'v_add_f32 {f[0]}, {f[0]}, {f[2]}')
        a(f'global_store_dword {t1}, {f[0]}, s[50:51] sc1')
        a('L_noc12:')
        a('s_waitcnt vmcnt(0)')
        a('s_sub_u32 s15, s6, 4'); a(f's_lshl_b32 s3, s15, 2'); a(f's_add_u32 s3, s3, {L_FL+128}'); a(f'v_mov_b32 {t1}, s3'); a(f'v_mov_b32 {t3}, 1'); a(f'ds_write_b32 {t1}, {t3}')
        a('s_cmp_eq_u32 s6, 4'); a('s_cbranch_scc0 L_nowf')
        self.ldsflag_wait(L_FL + 128, f[0:4], t1)
        a('s_lshl_b32 s15, s60, 1'); a('s_add_u32 s15, s15, s61'); a('s_lshl_b32 s15, s15, 7'); a(f's_add_u32 s15, s15, {WS_FLAGW}')
        a(f'v_mov_b32 {t1}, s15'); a(f'v_mov_b32 {t3}, s7'); a('s_mov_b64 exec, 1')
        a(f'global_store_dword {t1}, {t3}, s[50:51] sc1'); a('s_mov_b64 exec, -1')
        a('L_nowf:')
        self.stamp(7)
        v.restore(snap)

    def roles_cd(self):
        a = self.a
        a('s_lshr_b32 s16, s4, 1'); a('s_lshl_b32 s16, s16, 2'); a('s_lshr_b32 s3, s5, 3'); a('s_add_u32 s16, s16, s3')
        a('s_and_b32 s17, s4, 1'); a('s_lshl_b32 s17, s17, 3'); a('s_and_b32 s3, s5, 7'); a('s_add_u32 s17, s17, s3')
        a('s_mul_i32 s3, s5, 37'); a('s_lshr_b32 s3, s3, 8'); a('s_lshl_b32 s18, s4, 2'); a('s_add_u32 s18, s18, s3')
        a('s_mul_i32 s3, s3, 7'); a('s_sub_u32 s19, s5, s3')
        a(f's_add_u32 s52, s50, {WS_X1}'); a('s_addc_u32 s53, s51, 0'); a(f's_mov_b32 s54, {224*8192}'); a('s_mov_b32 s55, 0x20000')
        a(f's_mul_i32 s3, s17, {7*SLOT}'); a(f's_add_u32 s3, s3, {WS_WP}')
        a('s_add_u32 s56, s50, s3'); a('s_addc_u32 s57, s51, 0'); a(f's_mov_b32 s58, {7*SLOT}'); a('s_mov_b32 s59, 0x20000')
        a(f's_add_u32 s20, s50, {WS_WD}'); a('s_addc_u32 s21, s51, 0'); a(f's_mov_b32 s22, {112*14336}'); a('s_mov_b32 s23, 0x20000')
        a(f's_add_u32 s24, s50, {WS_HH}'); a('s_addc_u32 s25, s51, 0'); a(f's_mov_b32 s26, {64*112*1024}'); a('s_mov_b32 s27, 0x20000')

    def g1_pre(self):
        a = self.a; v = self.v; t0, t1, t2, t3 = self.t; lane = self.lane
        a('s_mul_i32 s15, s17, 14'); a(f'v_min_u32 {t0}, 13, {lane}'); a(f'v_add_u32 {t0}, s15, {t0}'); a(f'v_lshlrev_b32 {t0}, 7, {t0}')
        a(f'v_add_u32 {t0}, {WS_FLAGW}, {t0}')
        self.poll(lambda: a(f'global_load_dword {t1}, {t0}, s[50:51] sc1'), lambda: a(f'v_cmp_ne_u32 vcc, s7, {t1}'))
        self.stamp(8)
        a('s_barrier')
        a('s_sub_u32 s15, s6, 4'); a('s_lshl_b32 s15, s15, 10'); a(f'v_lshlrev_b32 {t2}, 4, {lane}')
        for i in range(36):
            a('s_mov_b32 m0, s15'); a(f'buffer_load_dwordx4 {t2}, s[56:59], s15 offen sc1 lds')
            if i < 35: a('s_add_u32 s15, s15, 4096')
        a('s_cmp_lt_u32 s6, 6'); a('s_cbranch_scc0 L_noc12d')
        a('s_sub_u32 s15, s6, 4'); a('s_lshl_b32 s15, s15, 10'); a(f's_add_u32 m0, s15, {L_C12}')
        a('s_mul_i32 s3, s17, 1792'); a('s_add_u32 s3, s3, s15'); a(f's_add_u32 s3, s3, {WS_C12}'); a(f'v_add_u32 {t3}, s3, {t2}')
        a(f'global_load_lds_dwordx4 {t3}, s[50:51] sc1')
        a('L_noc12d:')
        a(f'v_and_b32 {t0}, 255, v0'); a(f'v_min_u32 {t0}, 223, {t0}'); a(f'v_lshlrev_b32 {t0}, 13, {t0}')
        a('s_lshl_b32 s15, s16, 9'); a('s_add_u32 s15, s15, 508')
        self.poll(lambda: a(f'buffer_load_dword {t1}, {t0}, s[52:55], s15 offen sc1'), lambda: a(f'v_cmp_eq_u32 vcc, -1, {t1}'))
        self.stamp(9)
        a('s_barrier')
        a('s_cmp_eq_u32 s6, 4'); a('s_cbranch_scc0 L_nogb')
        g = v.alloc('gbt', 4, 4)
        a('s_lshl_b32 s15, s19, 9'); a(f's_add_u32 s15, s15, {WS_MOD + 5*448*8}'); a(f'v_and_b32 {t0}, 31, {lane}'); a(f'v_lshl_add_u32 {t1}, {t0}, 4, s15')
        def ck():
            a(f'v_xor_b32 {g[1]}, s7, {g[1]}'); a(f'v_xor_b32 {g[3]}, s7, {g[3]}'); a(f'v_or_b32 {g[1]}, {g[1]}, {g[3]}'); a(f'v_cmp_ne_u32 vcc, 0, {g[1]}')
        self.poll(lambda: a(f'global_load_dwordx4 {g}, {t1}, s[50:51] sc1'), ck)
        a(f'v_lshlrev_b32 {t0}, 3, {t0}'); a(f'v_add_u32 {t0}, {L_GB}, {t0}'); a(f'ds_write2_b32 {t0}, {g[0]}, {g[2]} offset0:0 offset1:1')
        a('s_waitcnt lgkmcnt(0)')
        v.free('gbt')
        a('L_nogb:')

    def gemm1(self):
        a = self.a; v = self.v; t0, t1, t2, t3 = self.t; lane = self.lane
        snap = v.snapshot()
        v.free('wd')
        X = v.alloc('X', 112, 4); ACC = [v.alloc(f'acc{i}', 16, 4) for i in range(5)]; AF = v.alloc('AF', 32, 4)
        vo = v.alloc('vo', 4); la = v.alloc('la', 2); st = v.alloc('st', 4); hh = v.alloc('hho', 4, 4); ha = v.alloc('ha', 2); ca = v.alloc('ca')
        a(f'v_lshrrev_b32 {t0}, 5, {lane}'); a(f'v_and_b32 {t1}, 31, {lane}'); a(f'v_lshlrev_b32 {vo[0]}, 15, {t0}'); a(f'v_lshl_add_u32 {vo[0]}, {t1}, 2, {vo[0]}')
        a('s_lshl_b32 s15, s16, 9'); a('s_lshl_b32 s3, s6, 7'); a('s_add_u32 s15, s15, s3'); a(f'v_add_u32 {vo[0]}, s15, {vo[0]}')
        for j in range(1, 4): a(f'v_add_u32 {vo[j]}, {8192*j}, {vo[0]}')
        a(f'v_bfe_u32 {t1}, {lane}, 4, 1'); a(f'v_mul_u32_u24 {la[0]}, 14592, {t1}'); a(f'v_bfe_u32 {t1}, {lane}, 2, 2'); a(f'v_mul_u32_u24 {t1}, 3648, {t1}')
        a(f'v_and_b32 {t2}, 3, {lane}'); a(f'v_lshlrev_b32 {t2}, 4, {t2}'); a(f'v_add3_u32 {la[0]}, {la[0]}, {t1}, {t2}'); a(f'v_lshl_add_u32 {la[0]}, {t0}, 6, {la[0]}')
        a(f'v_add_u32 {la[1]}, {3*SLOT}, {la[0]}')
        a(f'v_lshlrev_b32 {ca}, 4, {t0}'); a(f'v_add_u32 {ca}, {L_C12}, {ca}')
        a('s_lshl_b32 s15, s16, 2'); a('s_add_u32 s15, s15, s6'); a('s_mul_i32 s15, s15, 112'); a('s_mul_i32 s3, s17, 7'); a('s_add_u32 s15, s15, s3')
        a('s_lshl_b32 s15, s15, 10'); a(f's_add_u32 s15, s15, {WS_HH}'); a(f'v_lshl_add_u32 {ha[0]}, {lane}, 4, s15'); a(f'v_add_u32 {ha[1]}, 4096, {ha[0]}')
        a('s_barrier')
        a('s_barrier')
        self.stamp(9)
        retry = self.s.alloc('retry'); a(f's_mov_b32 {retry}, 0')
        a('L_p1:')
        def xload(ks):
            a(f's_mov_b32 s15, {ks*65536}')
            for j in range(4): a(f'buffer_load_dword {X[4*ks+j]}, {vo[j]}, s[52:55], s15 offen sc1')
        def aread(slot, ks, dst):
            base = la[0] if slot < 3 else la[1]; off = (slot if slot < 3 else slot - 3) * SLOT + ks * 128
            return f'ds_read_b128 {dst}, {base} offset:{off}'
        PRE = 15
        for ks in range(PRE): xload(ks)
        for tl in range(4): a(aread(tl, 0, AF[4*tl:4*tl+4]))
        for k in range(4): a(f'v_mov_b32 {st[k]}, 0')
        for ks in range(28):
            b = (ks & 1) * 16
            issued = min(28, PRE + ks)
            a(f's_waitcnt vmcnt({4*(issued - ks - 1)}) lgkmcnt(0)')
            for tl in range(4):
                a(f'v_mfma_f32_32x32x16_bf16 {ACC[tl]}, {AF[b+4*tl:b+4*tl+4]}, {X[4*ks:4*ks+4]}, {ACC[tl] if ks else 0}')
                if ks < 27: a(aread(tl, ks + 1, AF[16-b+4*tl:16-b+4*tl+4]))
                elif tl >= 0: a(aread(4, tl, AF[16-b+4*tl:16-b+4*tl+4]))
                a(f'v_dot2c_f32_bf16 {st[tl & 1]}, 0x3f803f80, {X[4*ks+tl]}'); a(f'v_dot2c_f32_bf16 {st[2 + (tl & 1)]}, {X[4*ks+tl]}, {X[4*ks+tl]}')
                if tl == 0 and PRE + ks < 28: xload(PRE + ks)
        a(f'v_add_f32 {st[0]}, {st[0]}, {st[1]}'); a(f'v_add_f32 {st[2]}, {st[2]}, {st[3]}')
        a(f'v_mov_b32 {st[1]}, {st[0]}'); a(f'v_mov_b32 {st[3]}, {st[2]}')
        a(f'v_permlane32_swap_b32 {st[0]}, {st[1]}'); a(f'v_permlane32_swap_b32 {st[2]}, {st[3]}')
        a(f'v_add_f32 {st[0]}, {st[0]}, {st[1]}'); a(f'v_add_f32 {st[2]}, {st[2]}, {st[3]}')
        a(f'v_cmp_u_f32 vcc, {st[2]}, {st[2]}'); a('s_cbranch_vccz L_p1ok')
        a(f's_add_u32 {retry}, {retry}, 1'); a(f's_cmp_lt_u32 {retry}, 64'); a('s_waitcnt lgkmcnt(0)'); a('s_nop 15'); a('s_cbranch_scc1 L_p1')
        for tl in range(4): a(aread(4, tl, AF[4*tl:4*tl+4]))
        a('L_p1ok:')
        self.s.free('retry')
        inv = 0x3b124925
        a(f'v_mul_f32 {st[0]}, 0x{inv:x}, {st[0]}'); a(f'v_mul_f32 {st[2]}, 0x{inv:x}, {st[2]}')
        a(f'v_fma_f32 {st[2]}, -{st[0]}, {st[0]}, {st[2]}'); a(f'v_max_f32 {st[2]}, 0, {st[2]}')
        a(f'v_cvt_pk_bf16_f32 {st[2]}, {st[2]}, {st[2]}'); a(f'v_and_b32 {st[2]}, 0xffff0000, {st[2]}'); a(f'v_add_f32 {st[2]}, 0x3727c5ac, {st[2]}')
        a(f'v_cvt_pk_bf16_f32 {st[2]}, {st[2]}, {st[2]}'); a(f'v_and_b32 {st[2]}, 0xffff0000, {st[2]}'); a(f'v_sqrt_f32 {st[2]}, {st[2]}')
        a(f'v_cvt_pk_bf16_f32 {st[2]}, {st[2]}, {st[2]}'); a(f'v_and_b32 {st[2]}, 0xffff0000, {st[2]}'); a(f'v_rcp_f32 {st[2]}, {st[2]}')
        a(f'v_mul_f32 {st[0]}, {st[0]}, {st[2]}'); a(f'v_sub_f32 {st[0]}, 0, {st[0]}')
        rr, nm = st[2], st[0]
        a('s_barrier')
        self.stamp(10)
        C = AF[16:32]
        def epi_ops(jt, acc):
            ops = []
            for g in range(2):
                o = jt * 256 + 32 * g
                ops += [('ds', f'ds_read_b128 {C[0:4]}, {ca} offset:{o}'), ('ds', f'ds_read_b128 {C[4:8]}, {ca} offset:{o+64}'),
                        ('ds', f'ds_read_b128 {C[8:12]}, {ca} offset:{o+128}'), ('ds', f'ds_read_b128 {C[12:16]}, {ca} offset:{o+192}'), ('wait', None)]
                for e in range(4):
                    ops += [('v', f'v_fmac_f32 {C[4+e]}, {nm}, {C[e]}'), ('v', f'v_fmac_f32 {C[12+e]}, {nm}, {C[8+e]}')]
                for e in range(4):
                    ops += [('v', f'v_fmac_f32 {C[4+e]}, {rr}, {acc[4*g+e]}'), ('v', f'v_fmac_f32 {C[12+e]}, {rr}, {acc[8+4*g+e]}')]
                for e in range(4): ops += [('v', f'v_mul_f32 {C[4+e]}, {C[4+e]}, {C[12+e]}')]
                ops += [('v', f'v_cvt_pk_bf16_f32 {hh[2*g]}, {C[4]}, {C[5]}'), ('v', f'v_cvt_pk_bf16_f32 {hh[2*g+1]}, {C[6]}, {C[7]}')]
            ops += [('st', f'global_store_dwordx4 {ha[jt // 4]}, {hh}, s[50:51] offset:{1024*(jt % 4)} sc1')]
            return ops
        q = ['a', 'a', 'a', 'a']
        def lds(tag, txt): a(txt); q.append(tag)
        def wait_tag_count(n_after):
            a(f's_waitcnt lgkmcnt({n_after})')
        seq = [(4, 4, ACC[4], [(0, ACC[0]), (1, ACC[1])]), (5, 0, ACC[0], [(2, ACC[2]), (3, ACC[3])]), (6, 1, ACC[1], [(4, ACC[4]), (5, ACC[0])])]
        flat = [(tile, slot, acc, ks) for (tile, slot, acc, _) in seq for ks in range(28)]
        pend = {}
        for i in range(4): pend[i] = i
        for n, (tile, slot, acc, ks) in enumerate(flat):
            if ks == 0:
                eops = []
                for (jt, ac) in [x for x in seq if x[0] == tile][0][3]: eops += epi_ops(jt, ac)
                start = 1 if tile != 6 else 0
                ei = 0; cwait = None
            a(f's_waitcnt lgkmcnt({min(15, len(q) - 1 - pend[n])})')
            r = AF[4*(n % 4):4*(n % 4)+4]
            a(f'v_mfma_f32_32x32x16_bf16 {acc}, {r}, {X[4*ks:4*ks+4]}, {acc if ks else 0}')
            if n + 4 < len(flat):
                t2_, s2_, _, k2 = flat[n + 4]
                if t2_ == 5 and k2 == 0: a('s_barrier')
                lds('a', aread(s2_, k2, r)); pend[n + 4] = len(q) - 1
            want = (len(eops) * (ks + 1) + 26) // 27 if ks < 27 else len(eops)
            while ei < min(want, len(eops)):
                kind, txt = eops[ei]
                if kind == 'ds': lds('c', txt); cwait = len(q) - 1
                elif kind == 'wait': a(f's_waitcnt lgkmcnt({min(15, len(q) - 1 - cwait)})')
                else: a(txt)
                ei += 1
        for kind, txt in epi_ops(6, ACC[1]):
            if kind == 'wait': a('s_waitcnt lgkmcnt(0)')
            else: a(txt)
        a('s_barrier')
        a('s_waitcnt vmcnt(0)')
        a('s_lshl_b32 s15, s16, 4'); a('s_add_u32 s15, s15, s17'); a('s_lshl_b32 s15, s15, 2'); a('s_add_u32 s15, s15, s6'); a('s_lshl_b32 s15, s15, 7')
        a(f's_add_u32 s15, s15, {WS_FLAGH}'); a(f'v_mov_b32 {t0}, s15'); a(f'v_mov_b32 {t1}, s7'); a('s_mov_b64 exec, 1')
        a(f'global_store_dword {t0}, {t1}, s[50:51] sc1'); a('s_mov_b64 exec, -1')
        v.restore(snap)

    def gemm2(self):
        a = self.a; v = self.v; t0, t1, t2, t3 = self.t; lane = self.lane
        snap = v.snapshot()
        v.free('wd')
        ACC = v.alloc('acc', 64, 4); WA = v.alloc('WA', 112, 4); HB = v.alloc('HB', 64, 4); va = v.alloc('va'); vb = v.alloc('vb', 2)
        wq = self.s.alloc('wq'); a(f's_sub_u32 {wq}, s6, 4')
        a(f'v_lshrrev_b32 {t0}, 5, {lane}'); a(f'v_mul_u32_u24 {va}, 7168, {t0}'); a(f'v_bfe_u32 {t0}, {lane}, 4, 1'); a(f'v_mul_u32_u24 {t0}, 3584, {t0}')
        a(f'v_and_b32 {t1}, 15, {lane}'); a(f'v_lshlrev_b32 {t1}, 4, {t1}'); a(f'v_add3_u32 {va}, {va}, {t0}, {t1}')
        a('s_lshl_b32 s15, s19, 9'); a(f's_mul_i32 s3, {wq}, {28*14336}'); a('s_add_u32 s15, s15, s3'); a(f'v_add_u32 {va}, s15, {va}')
        a(f's_mul_i32 s15, s18, {2*112*1024}'); a(f's_mul_i32 s3, {wq}, {28*1024}'); a('s_add_u32 s15, s15, s3')
        a(f'v_lshl_add_u32 {vb[0]}, {lane}, 4, s15'); a(f'v_add_u32 {vb[1]}, {112*1024}, {vb[0]}')
        order = [7*i + jt for jt in range(7) for i in range(4)]
        vq = []
        def aload(n):
            r = WA[8*(n % 14):8*(n % 14)+8]
            a(f's_mov_b32 s15, {order[n]*14336}')
            a(f'buffer_load_dwordx4 {r[0:4]}, {va}, s[20:23], s15 offen sc1'); a(f'buffer_load_dwordx4 {r[4:8]}, {va}, s[20:23], s15 offen offset:256 sc1')
            vq.extend([('a', n), ('a', n)])
        def bload(n):
            r = HB[8*(n % 8):8*(n % 8)+8]
            a(f's_mov_b32 s15, {order[n]*1024}')
            a(f'buffer_load_dwordx4 {r[0:4]}, {vb[0]}, s[24:27], s15 offen sc1'); a(f'buffer_load_dwordx4 {r[4:8]}, {vb[1]}, s[24:27], s15 offen sc1')
            vq.extend([('b', n), ('b', n)])
        a('s_cmp_lt_u32 s5, 28'); a('s_cbranch_scc0 L_g2a')
        for n in range(14): aload(n)
        a('L_g2a:')
        a('s_barrier')
        a(f's_lshl_b32 s15, {wq}, 10'); a(f'v_lshlrev_b32 {t2}, 4, {lane}')
        for i in range(15):
            a('s_mov_b32 m0, s15'); a(f's_add_u32 s3, s15, {5*SLOT}')
            if i == 14:
                a(f's_cmp_lt_u32 {wq}, 1'); a('s_cbranch_scc0 L_dma2')
            a(f'buffer_load_dwordx4 {t2}, s[56:59], s3 offen sc1 lds')
            if i < 14: a('s_add_u32 s15, s15, 4096')
        a('L_dma2:')
        a('s_waitcnt vmcnt(0)'); vq.clear()
        a('s_barrier')
        a('s_cmp_lt_u32 s5, 28'); a('s_cbranch_scc1 L_g2go')
        a('s_barrier')
        a('s_branch L_fin')
        a('L_g2go:')
        a('s_lshr_b32 s15, s18, 1'); a('s_lshl_b32 s15, s15, 6'); a(f's_lshl_b32 s3, {wq}, 4'); a('s_add_u32 s15, s15, s3')
        a('s_and_b32 s3, s18, 1'); a('s_lshl_b32 s3, s3, 1'); a('s_add_u32 s15, s15, s3')
        a(f'v_bfe_u32 {t0}, {lane}, 1, 2'); a(f'v_and_b32 {t1}, 1, {lane}'); a(f'v_lshl_add_u32 {t0}, {t0}, 2, {t1}'); a(f'v_add_u32 {t0}, s15, {t0}')
        a(f'v_lshlrev_b32 {t0}, 7, {t0}'); a(f'v_add_u32 {t0}, {WS_FLAGH}, {t0}')
        a('s_barrier')
        self.poll(lambda: a(f'global_load_dword {t1}, {t0}, s[50:51] sc1'), lambda: a(f'v_cmp_ne_u32 vcc, s7, {t1}'))
        self.stamp(10)
        for n in range(8): bload(n)
        xe = None
        for n in range(28):
            last = max(i for i, e in enumerate(vq) if e in (('a', n), ('b', n))) if any(e in (('a', n), ('b', n)) for e in vq) else -1
            a(f's_waitcnt vmcnt({len(vq) - 1 - last})')
            wa = WA[8*(n % 14):8*(n % 14)+8]; hb = HB[8*(n % 8):8*(n % 8)+8]
            for dt in range(2):
                for tt in range(2):
                    c = ACC[16*(2*dt+tt):16*(2*dt+tt)+16]
                    a(f'v_mfma_f32_32x32x16_bf16 {c}, {wa[4*dt:4*dt+4]}, {hb[4*tt:4*tt+4]}, {c if n else 0}')
            if n + 8 < 28: bload(n + 8)
            if n + 14 < 28: aload(n + 14)
            if n == 20:
                xe = WA[0:8]
                a(f'v_lshrrev_b32 {t0}, 5, {lane}'); a(f'v_lshlrev_b32 {t0}, 15, {t0}'); a(f'v_and_b32 {t1}, 31, {lane}'); a(f'v_lshl_add_u32 {t0}, {t1}, 2, {t0}')
                a(f's_lshr_b32 s3, {wq}, 1'); a('s_lshl_b32 s15, s19, 1'); a('s_add_u32 s15, s15, s3'); a('s_lshl_b32 s15, s15, 17')
                a(f's_and_b32 s3, {wq}, 1'); a('s_lshl_b32 s3, s3, 7'); a('s_add_u32 s15, s15, s3'); a('s_lshl_b32 s3, s18, 8'); a('s_add_u32 s15, s15, s3')
                a(f'v_add_u32 {t0}, s15, {t0}')
                for r in range(8):
                    a(f's_mov_b32 s15, {((r & 3) + 8*(r >> 2))*8192}'); a(f'buffer_load_dword {xe[r]}, {t0}, s[52:55], s15 offen sc1'); vq.append(('x', r))
        a(f's_lshl_b32 s15, {wq}, 14'); a(f'v_lshl_add_u32 {t2}, {lane}, 4, s15')
        for k in range(16): a(f'ds_write_b128 {t2}, {ACC[4*k:4*k+4]} offset:{1024*k}')
        a(f's_lshl_b32 s15, {wq}, 2'); a(f's_add_u32 s15, s15, {L_FL+192}'); a(f'v_mov_b32 {t2}, s15'); a(f'v_mov_b32 {t3}, 1'); a(f'ds_write_b32 {t2}, {t3}')
        gb = WA[16:32]; P = HB
        a(f'v_lshrrev_b32 {t0}, 5, {lane}'); a(f'v_lshlrev_b32 {t2}, 5, {t0}'); a(f's_lshr_b32 s3, {wq}, 1'); a('s_lshl_b32 s3, s3, 7'); a(f's_add_u32 s3, s3, {L_GB}'); a(f'v_add_u32 {t2}, s3, {t2}')
        for k in range(4): a(f'ds_read_b128 {gb[4*k:4*k+4]}, {t2} offset:{16*(k & 1) + 64*(k >> 1)}')
        a(f'v_and_b32 {t1}, 31, {lane}'); a(f's_and_b32 s3, {wq}, 1'); a('s_lshl_b32 s3, s3, 5'); a('s_lshl_b32 s15, s18, 6'); a('s_add_u32 s15, s15, s3')
        a(f'v_add_u32 {t1}, s15, {t1}'); a(f'v_mul_u32_u24 {t1}, 896, {t1}'); a(f'v_lshl_add_u32 {t1}, {t0}, 4, {t1}')
        a(f's_lshr_b32 s3, {wq}, 1'); a('s_lshl_b32 s15, s19, 1'); a('s_add_u32 s15, s15, s3'); a('s_lshl_b32 s15, s15, 6'); a(f'v_add_u32 {t1}, s15, {t1}')
        self.ldsflag_wait(L_FL + 192, WA[32:36], t3)
        a(f's_lshl_b32 s15, {wq}, 12'); a(f'v_lshl_add_u32 {t2}, {lane}, 4, s15')
        for src in range(4):
            for k in range(4): a(f'ds_read_b128 {P[16*src+4*k:16*src+4*k+4]}, {t2} offset:{16384*src + 1024*k}')
        a('s_waitcnt lgkmcnt(8)')
        for r in range(16): a(f'v_add_f32 {P[r]}, {P[r]}, {P[16+r]}')
        a('s_waitcnt lgkmcnt(0)')
        for r in range(16): a(f'v_add_f32 {P[32+r]}, {P[32+r]}, {P[48+r]}')
        for r in range(16): a(f'v_add_f32 {P[r]}, {P[r]}, {P[32+r]}')
        a('s_waitcnt vmcnt(0)')
        for r in range(8):
            a(f'v_lshlrev_b32 {P[16+r]}, 16, {xe[r]}'); a(f'v_and_b32 {P[24+r]}, 0xffff0000, {xe[r]}')
            a(f'v_fmac_f32 {P[16+r]}, {gb[2*r]}, {P[r]}'); a(f'v_fmac_f32 {P[24+r]}, {gb[2*r+1]}, {P[8+r]}')
        for r in range(8): a(f'v_cvt_pk_bf16_f32 {P[32+r]}, {P[16+r]}, {P[24+r]}')
        a(f'global_store_dwordx4 {t1}, {P[32:36]}, s[46:47]'); a(f'global_store_dwordx4 {t1}, {P[36:40]}, s[46:47] offset:32')
        a('s_cmp_eq_u32 s2, 0'); a('s_cbranch_scc0 L_fin'); a('s_cmp_eq_u32 s6, 4'); a('s_cbranch_scc0 L_fin')
        a(f'v_mov_b32 {t0}, 0'); a(f'v_mov_b32 {t2}, s7'); a('s_mov_b64 exec, 1'); a(f'global_store_dword {t0}, {t2}, s[50:51] sc1'); a('s_mov_b64 exec, -1')
        self.s.free('wq')
        v.restore(snap)

    def finish(self):
        a = self.a
        a('L_fin:')
        if self.diag:
            t0, t1 = self.t[0], self.t[1]
            a('s_memrealtime s[98:99]'); a('s_waitcnt lgkmcnt(0)')
            a('s_lshl_b32 s3, s2, 3'); a('s_add_u32 s3, s3, s6'); a('s_lshl_b32 s3, s3, 6'); a(f's_add_u32 s3, s3, {WS_TIME}')
            a(f'v_mov_b32 {t0}, s3'); a('s_mov_b64 exec, 1')
            for k in range(12):
                a(f'v_mov_b32 {t1}, s{76+2*k}'); a(f'global_store_dword {t0}, {t1}, s[50:51] offset:{4*k}')
            a('s_mov_b64 exec, -1')
        a('L_end:'); a('s_endpgm')

    def build(self):
        self.npref = 3
        a = self.a
        if self.diag:
            for k in range(12): a(f's_mov_b32 s{76+2*k}, 0')
        self.phaseA(); self.kgen(); self.phase4()
        self.roles_cd()
        a('s_cmp_lt_u32 s6, 4'); a('s_cbranch_scc0 L_g1')
        a('s_cmp_lt_u32 s4, 7'); a('s_cbranch_scc0 L_g0b')
        self.conv()
        a('L_g0b:')
        self.gemm1()
        a('s_branch L_fin')
        a('L_g1:')
        a('s_cmp_lt_u32 s4, 7'); a('s_cbranch_scc0 L_g1b')
        self.wprep()
        a('L_g1b:')
        self.g1_pre()
        self.gemm2()
        self.finish()
        bad = a.check_branches()
        for b in bad: print('HAZARD across branch:', b, file=sys.stderr)
        hdr = open('cdna_kernels/' + NAME + '.s.ref').read().split('; Override launch')[0]
        out = hdr + f'; @launch grid=(256,1,1) block=(512,1,1) lds={LDS_TOTAL}\n'
        out += f'.amdgcn_target "amdgcn-amd-amdhsa--gfx950"\n.text\n.globl {NAME}_kernel\n.p2align 8\n.type {NAME}_kernel,@function\n{NAME}_kernel:\n'
        out += a.text() + '\nL_code_end:\n'
        out += f'''.section .rodata,"a"
.p2align 6
.amdhsa_kernel {NAME}_kernel
  .amdhsa_next_free_vgpr 256
  .amdhsa_next_free_sgpr 102
  .amdhsa_accum_offset 256
  .amdhsa_group_segment_fixed_size 0
  .amdhsa_kernarg_size 144
  .amdhsa_user_sgpr_count 2
  .amdhsa_user_sgpr_kernarg_segment_ptr 1
  .amdhsa_system_sgpr_workgroup_id_x 1
.end_amdhsa_kernel
'''
        print(f'vgpr max {self.v.max} nops {a.nnops} insts {len(a.ins)}', file=sys.stderr)
        return out

if __name__ == '__main__':
    diag = '--diag' in sys.argv
    open(sys.argv[1], 'w').write(Gen(diag=diag).build())
```

```python
import re

class RegAlloc:
    def __init__(self, prefix, lo, hi):
        self.prefix = prefix; self.lo = lo; self.hi = hi
        self.used = [False] * (hi + 1); self.names = {}; self.max = lo - 1
    def alloc(self, name, n=1, align=None):
        if align is None: align = 1 if n == 1 else 2
        if name in self.names: raise Exception('dup reg ' + name)
        i = self.lo
        while True:
            i = (i + align - 1) // align * align
            if i + n - 1 > self.hi: raise Exception(f'out of {self.prefix} regs for {name} n={n}')
            if not any(self.used[i:i+n]): break
            i += 1
        for k in range(i, i + n): self.used[k] = True
        self.names[name] = (i, n); self.max = max(self.max, i + n - 1)
        return R(self.prefix, i, n)
    def at(self, name, i, n=1):
        if any(self.used[i:i+n]): raise Exception(f'reg clash {name} at {i}')
        for k in range(i, i + n): self.used[k] = True
        self.names[name] = (i, n); self.max = max(self.max, i + n - 1)
        return R(self.prefix, i, n)
    def free(self, *names):
        for name in names:
            i, n = self.names.pop(name)
            for k in range(i, i + n): self.used[k] = False
    def snapshot(self): return (list(self.used), dict(self.names))
    def restore(self, s): self.used = list(s[0]); self.names = dict(s[1])
    def nfree(self): return sum(1 for k in range(self.lo, self.hi + 1) if not self.used[k])

class R:
    def __init__(self, p, i, n): self.p = p; self.i = i; self.n = n
    def __str__(self): return f'{self.p}{self.i}' if self.n == 1 else f'{self.p}[{self.i}:{self.i+self.n-1}]'
    __repr__ = __str__
    def __format__(self, spec): return str(self)
    def __getitem__(self, k):
        if isinstance(k, slice):
            a = k.start or 0; b = self.n if k.stop is None else k.stop
            assert 0 <= a < b <= self.n, (a, b, self.n)
            return R(self.p, self.i + a, b - a)
        assert 0 <= k < self.n, (k, self.n)
        return R(self.p, self.i + k, 1)

TRANS = ('v_exp_f32', 'v_log_f32', 'v_rcp_f32', 'v_rsq_f32', 'v_sqrt_f32', 'v_sin_f32', 'v_cos_f32', 'v_rcp_iflag_f32')
reg_re = re.compile(r'\b([vsa])(\d+)\b|\b([vsa])\[(\d+):(\d+)\]|\b(vcc|exec|m0|scc)(_lo|_hi)?\b')

def regs_of(txt):
    out = set()
    for m in reg_re.finditer(txt):
        if m.group(1): out.add((m.group(1), int(m.group(2))))
        elif m.group(3):
            for k in range(int(m.group(4)), int(m.group(5)) + 1): out.add((m.group(3), k))
        else: out.add((m.group(6), 0))
    return out

class Ins:
    def __init__(self, text):
        self.text = text
        t = text.split(';')[0].strip()
        self.label = t.endswith(':')
        self.op = t.split()[0] if t and not self.label else ''
        rest = t[len(self.op):].strip() if not self.label else ''
        ops = []; depth = 0; cur = ''
        for ch in rest:
            if ch == '[': depth += 1
            if ch == ']': depth -= 1
            if ch == ',' and depth == 0: ops.append(cur.strip()); cur = ''
            else: cur += ch
        if cur.strip(): ops.append(cur.strip())
        self.ops = ops
        op = self.op
        self.valu = op.startswith('v_') and not op.startswith('v_mfma')
        self.mfma = op.startswith('v_mfma')
        self.trans = any(op.startswith(x) for x in TRANS)
        self.dpp = '_dpp' in op or 'row_' in t or 'quad_perm' in t
        self.dot = op.startswith('v_dot')
        self.vmem = op.startswith(('global_', 'buffer_', 'flat_'))
        self.ds = op.startswith('ds_')
        self.salu = op.startswith('s_')
        self.lds_dma = self.vmem and (' lds' in t or 'load_lds' in op)
        self.w = set(); self.r = set()
        first = lambda s: regs_of(s.split()[0]) if s else set()
        if self.valu or self.mfma:
            if op.startswith('v_cmp'):
                self.w = first(ops[0]); rd = ops[1:]
            elif op.startswith(('v_permlane32_swap', 'v_permlane16_swap', 'v_swap')):
                self.w = first(ops[0]) | first(ops[1]); rd = ops
            elif op.startswith(('v_add_co', 'v_sub_co', 'v_addc_co', 'v_subb_co')):
                self.w = first(ops[0]) | first(ops[1]); rd = ops[2:]
            elif op == 'v_nop': rd = []
            else:
                self.w = first(ops[0]); rd = ops[1:]
                if op.startswith(('v_fmac', 'v_dot2c', 'v_pk_fmac')) or self.dpp: rd = ops
            for o in rd: self.r |= first(o.lstrip('-').replace('abs(', '').replace('|', ''))
            if op.startswith('v_cndmask') and len(ops) == 3: self.r.add(('vcc', 0))
        elif self.vmem:
            if 'store' in op or ('atomic' in op and 'sc0' not in t):
                for o in ops: self.r |= first(o)
            elif self.lds_dma:
                for o in ops: self.r |= first(o)
                self.r.add(('m0', 0))
            else:
                self.w = first(ops[0])
                for o in ops[1:]: self.r |= first(o)
                if 'd16' in op: self.r |= self.w
        elif self.ds:
            if op.startswith(('ds_read', 'ds_bpermute', 'ds_permute', 'ds_swizzle')) or '_rtn' in op:
                self.w = first(ops[0])
                for o in ops[1:]: self.r |= first(o)
            else:
                for o in ops: self.r |= first(o)
            if 'addtid' in op: self.r.add(('m0', 0))
        elif self.salu:
            if op.startswith(('s_cmp', 's_cbranch', 's_branch', 's_waitcnt', 's_nop', 's_barrier', 's_endpgm', 's_sleep', 's_setprio', 's_bitcmp')):
                for o in ops: self.r |= first(o)
            elif ops:
                self.w = first(ops[0])
                for o in ops[1:]: self.r |= first(o)
                if 'saveexec' in op: self.w.add(('exec', 0))
        if self.mfma:
            self.passes = 8 if '32x32x16' in op else 4
            self.A = first(ops[1]); self.B = first(ops[2]); self.C = first(ops[3]); self.D = first(ops[0])
        self.widestore = self.vmem and 'store' in op and ('x4' in op or 'x3' in op)
        if self.widestore:
            self.sdata = first(ops[1]) if op.startswith('global_') else first(ops[0])
    def slots(self):
        if self.label or not self.op or self.op.startswith('.'): return 0
        if self.op == 's_nop': return int(self.ops[0], 0) + 1
        return 1

def need(p, c):
    n = 0
    vw = {x for x in p.w if x[0] in 'va'}; sw = {x for x in p.w if x[0] in ('s', 'vcc')}
    if p.valu:
        if c.dpp and c.valu and (vw & c.r): n = max(n, 2)
        if p.trans and c.valu and not c.trans and (vw & c.r): n = max(n, 1)
        if c.valu and (sw & c.r): n = max(n, 4 if c.op.startswith(('v_readlane', 'v_writelane')) else 2)
        if c.vmem and (sw & c.r): n = max(n, 5)
        if c.mfma and (vw & c.r): n = max(n, 2)
        if c.op.startswith(('v_readlane', 'v_readfirstlane')) and (vw & c.r): n = max(n, 1)
        if c.op.startswith('v_permlane') and (vw & c.r): n = max(n, 2)
        if p.dot:
            if c.dot and c.op == p.op:
                srcab = set()
                for o in c.ops[1:3]: srcab |= regs_of(o.split()[0])
                if vw & srcab: n = max(n, 3)
            elif (vw & (c.r | c.w)) and (c.valu or c.mfma or c.vmem or c.ds): n = max(n, 3)
    if p.mfma:
        big = 12 if p.passes == 8 else 8
        if c.mfma:
            if p.D & (c.A | c.B): n = max(n, big)
            if p.D & c.C and not (p.D == c.C and p.passes == c.passes): n = max(n, big - 2)
            if (p.D & c.D) and not (p.D & c.C): n = max(n, big - 2)
        elif (c.valu and (p.D & (c.r | c.w))) or ((c.vmem or c.ds) and (p.D & (c.r | c.w))): n = max(n, big)
        if c.valu and (p.C & c.w): n = max(n, 7 if p.passes == 8 else 3)
    if p.salu and ('m0', 0) in p.w and ('m0', 0) in c.r and (c.ds or c.vmem): n = max(n, 1)
    if p.widestore and (c.valu or c.mfma) and (p.sdata & c.w): n = max(n, 2)
    if p.widestore and (c.vmem or c.ds) and (p.sdata & c.w): n = max(n, 1)
    return n

class Asm:
    def __init__(self):
        self.ins = []; self.nlabel = 0; self.nnops = 0
    def __call__(self, text):
        for line in text.split('\n'):
            line = line.strip()
            if not line or line.startswith(';'): continue
            self._emit(Ins(line))
    def _emit(self, c):
        if c.op and not c.op.startswith('.'):
            d = 0; req = 0
            for p in reversed(self.ins):
                if d >= 20: break
                if p.op and not p.label:
                    n = need(p, c)
                    if n - d > req: req = n - d
                d += p.slots()
            if req > 0:
                self.nnops += 1
                self.ins.append(Ins(f's_nop {req-1}'))
        self.ins.append(c)
    def label(self, base='L'):
        self.nlabel += 1; return f'{base}_{self.nlabel}'
    def check_branches(self):
        pos = {i.text.split(';')[0].strip()[:-1]: k for k, i in enumerate(self.ins) if i.label}
        bad = []
        for k, i in enumerate(self.ins):
            if i.op.startswith(('s_cbranch', 's_branch')) and i.ops[0] in pos:
                tgt = pos[i.ops[0]]
                head = []; d = 0
                for c in self.ins[tgt:]:
                    if d >= 20: break
                    head.append((c, d)); d += c.slots()
                    if c.op in ('s_branch', 's_endpgm'): break
                d0 = 0
                for p in reversed(self.ins[:k+1]):
                    if d0 >= 20: break
                    if p.op and not p.label:
                        for c, dc in head:
                            if c.op and not c.label and need(p, c) > d0 + dc: bad.append((p.text, c.text, need(p, c), d0 + dc))
                    d0 += p.slots()
        return bad
    def text(self):
        return '\n'.join((i.text if i.label else '    ' + i.text) for i in self.ins)

def check_async(asm):
    out = []; vm = []; lg = []
    for k, i in enumerate(asm.ins):
        if not i.op: continue
        if i.op == 's_waitcnt':
            t = i.text
            m = re.search(r'vmcnt\((\d+)\)', t)
            if m:
                n = int(m.group(1)); vm = vm[len(vm)-n:] if n else []
            m = re.search(r'lgkmcnt\((\d+)\)', t)
            if m:
                n = int(m.group(1)); lg = lg[len(lg)-n:] if n else []
            continue
        if i.op in ('s_branch', 's_endpgm'):
            vm = []; lg = []; continue
        use = {x for x in (i.r | i.w) if x[0] == 'v'}
        for q in (vm, lg):
            for d, txt in q:
                if d & use and not ((i.vmem or i.ds) and d & i.w and not d & i.r): out.append((k, i.text, txt))
        if i.vmem: vm.append(({x for x in i.w if x[0] == 'v'}, i.text))
        elif i.ds: lg.append(({x for x in i.w if x[0] == 'v'}, i.text))
    return out
```

```python
import sys, math
from asmlib import Asm, RegAlloc, R, check_async

NAME = 'adaLN_cond__ssm_conv_s4__glu_gated_bilinear__prompt'
WS_EPOCH = 0
WS_STATS = 0x1000
WS_ST2   = 0x8000
WS_MOD   = 0x28000
MODS = 21504
WS_FLAGW = 0x20000
WS_C12   = 0x60000
WS_FLAGH = 0x40000
WS_TIME  = 0xa0000
WS_FLAGX = 0xc0000
WS_X1    = 0x100000
WS_X1S   = 0x2c0000
WS_WP    = 0x480000
WS_WD    = 0x7c0000
WS_HH    = 0x960000
WS_XT    = 0x1080000
WS_END   = 0x1400000
KROW = 2064
L_KP  = 0
L_H   = 16640
L_XR  = 25792
L_EX  = 34048
L_KV  = 110080
KVS   = 3088
SLOT = 29184
SLOTS = [66816, 96000, 125184, 0, 29184]
L_MODV = 154368
L_C12 = 157952
L_GB  = 159744
L_GS  = 155392
L_SS  = 160512
L_FL  = 160768
L_LV  = 161024
L_S2  = 161280
L_CS  = 161536
LDS_TOTAL = 163840
SPIN = 20000
LOG2E = 0x3fb8aa3b
INV2PI = 0x3e22f983
INV448 = 0x3b124925
EPS = 0x3727c5ac

class Gen:
    def __init__(self, diag=0, opt=()):
        self.opt = set(opt)
        self.a = Asm(); self.diag = diag
        self.v = RegAlloc('v', 1, 255); self.s = RegAlloc('s', 64, 75 if diag else 101)
        self.nt = ' nt' if 'nt' in self.opt else ''
        self.clk = 'memtime' if diag == 2 else 'memrealtime'
    def stamp2(self, k):
        if 'late' in self.opt and self.diag: self.a(f's_{self.clk} s[{76+2*k}:{77+2*k}]')
    def stamp3(self, k):
        if 'front' in self.opt and self.diag: self.a(f's_{self.clk} s[{76+2*k}:{77+2*k}]')
    def stamp(self, k):
        if 'front' in self.opt and 5 <= k <= 10: return
        if 'late' in self.opt and 1 <= k <= 8: return
        if self.diag:
            self.a(f's_{self.clk} s[{76+2*k}:{77+2*k}]')
            if k == 0: self.a('s_memrealtime s[100:101]')
    def poll(self, load, check, preissued=False, sleep=2):
        a = self.a; L = a.label('poll'); D = a.label('pdone'); S = a.label('pskip')
        cnt = self.s.alloc('spin')
        a(f's_mov_b32 {cnt}, 0')
        if preissued: a(f's_branch {S}')
        a(f'{L}:')
        load()
        if preissued: a(f'{S}:')
        a('s_waitcnt vmcnt(0)')
        check()
        a(f's_cbranch_vccz {D}')
        a(f's_add_u32 {cnt}, {cnt}, 1')
        a(f's_cmp_lt_u32 {cnt}, {SPIN}')
        a(f's_sleep {sleep}')
        a(f's_cbranch_scc1 {L}')
        a(f'{D}:')
        self.s.free('spin')
    def tagcheck(self, tags):
        a = self.a
        for r in tags: a(f'v_xor_b32 {r}, s7, {r}')
        acc = tags[0]; rest = list(tags[1:])
        while len(rest) >= 2:
            a(f'v_or3_b32 {acc}, {acc}, {rest[0]}, {rest[1]}'); rest = rest[2:]
        if rest: a(f'v_or_b32 {acc}, {acc}, {rest[0]}')
        a(f'v_cmp_ne_u32 vcc, 0, {acc}')
    def ldsflag_set(self, addr, idx_sgpr_expr, va, vb):
        a = self.a
        a(f's_lshl_b32 s3, {idx_sgpr_expr}, 2'); a(f's_add_u32 s3, s3, {addr}'); a(f'v_mov_b32 {va}, s3'); a(f'v_mov_b32 {vb}, 1'); a(f'ds_write_b32 {va}, {vb}')
    def ldsflag_wait(self, addr, tmp4, vaddr):
        a = self.a; L = a.label('lf'); D = a.label('lfd')
        cnt = self.s.alloc('spin')
        a(f's_mov_b32 {cnt}, 0'); a(f'v_mov_b32 {vaddr}, {addr}')
        a(f'{L}:')
        a(f'ds_read_b128 {tmp4}, {vaddr}'); a('s_waitcnt lgkmcnt(0)')
        a(f'v_and_b32 {tmp4[0]}, {tmp4[0]}, {tmp4[1]}'); a(f'v_and_b32 {tmp4[2]}, {tmp4[2]}, {tmp4[3]}'); a(f'v_and_b32 {tmp4[0]}, {tmp4[0]}, {tmp4[2]}')
        a(f'v_cmp_eq_u32 vcc, 0, {tmp4[0]}'); a(f's_cbranch_vccz {D}')
        a(f's_add_u32 {cnt}, {cnt}, 1'); a(f's_cmp_lt_u32 {cnt}, {SPIN*20}'); a(f's_cbranch_scc1 {L}')
        a(f'{D}:')
        self.s.free('spin')
    def ldsflag_wait8(self, addr, tmp8, vaddr):
        a = self.a; L = a.label('lf'); D = a.label('lfd')
        cnt = self.s.alloc('spin')
        a(f's_mov_b32 {cnt}, 0'); a(f'v_mov_b32 {vaddr}, {addr}')
        a(f'{L}:')
        a(f'ds_read_b128 {tmp8[0:4]}, {vaddr}'); a(f'ds_read_b128 {tmp8[4:8]}, {vaddr} offset:16'); a('s_waitcnt lgkmcnt(0)')
        for k in range(1, 8): a(f'v_and_b32 {tmp8[0]}, {tmp8[0]}, {tmp8[k]}')
        a(f'v_cmp_eq_u32 vcc, 0, {tmp8[0]}'); a(f's_cbranch_vccz {D}')
        a(f's_add_u32 {cnt}, {cnt}, 1'); a(f's_cmp_lt_u32 {cnt}, {SPIN*20}'); a(f's_cbranch_scc1 {L}')
        a(f'{D}:')
        self.s.free('spin')
    def cmul(self, O, X, Z, T):
        a = self.a
        a(f'v_pk_mul_f32 {T}, {X}, {Z} op_sel:[0,0] op_sel_hi:[1,0]')
        a(f'v_pk_fma_f32 {O}, {X}, {Z}, {T} op_sel:[1,1,0] op_sel_hi:[0,1,1] neg_lo:[1,0,0]')
    def srd(self, base, ptr, size):
        a = self.a
        a(f's_mov_b32 s{base}, s{ptr}'); a(f's_mov_b32 s{base+1}, s{ptr+1}'); a(f's_mov_b32 s{base+2}, {size}'); a(f's_mov_b32 s{base+3}, 0x20000')
    def wsrd(self, base, off, size):
        a = self.a
        a(f's_add_u32 s{base}, s50, {off}'); a(f's_addc_u32 s{base+1}, s51, 0'); a(f's_mov_b32 s{base+2}, {size}'); a(f's_mov_b32 s{base+3}, 0x20000')
    def rbf(self, r):
        self.a(f'v_cvt_pk_bf16_f32 {r}, {r}, {r}'); self.a(f'v_and_b32 {r}, 0xffff0000, {r}')
    def sd_from(self, S, Q):
        a = self.a
        a(f'v_mul_f32 {S}, 0x{INV448:x}, {S}'); a(f'v_mul_f32 {Q}, 0x{INV448:x}, {Q}')
        a(f'v_fma_f32 {Q}, -{S}, {S}, {Q}'); a(f'v_max_f32 {Q}, 0, {Q}'); self.rbf(Q)
        a(f'v_add_f32 {Q}, 0x{EPS:x}, {Q}'); self.rbf(Q); a(f'v_sqrt_f32 {Q}, {Q}')
    def quadsum_round(self, x, y):
        a = self.a
        for d in ['quad_perm:[1,0,3,2]', 'quad_perm:[2,3,0,1]']:
            a(f'v_add_f32_dpp {x}, {x}, {x} {d} row_mask:0xf bank_mask:0xf'); a(f'v_add_f32_dpp {y}, {y}, {y} {d} row_mask:0xf bank_mask:0xf')
        a(f'v_cvt_pk_bf16_f32 {y}, {x}, {y}'); a(f'v_lshlrev_b32 {x}, 16, {y}'); a(f'v_and_b32 {y}, 0xffff0000, {y}')
    def ifconv(self, L): self.a('s_cmp_lt_u32 s5, 28'); self.a(f's_cbranch_scc0 {L}')

    def prologue(self):
        a = self.a; v = self.v
        a('s_load_dwordx16 s[16:31], s[0:1], 0'); a('s_load_dwordx16 s[32:47], s[0:1], 64'); a('s_load_dwordx4 s[48:51], s[0:1], 128')
        self.stamp(0)
        a('s_cmp_ge_u32 s2, 256'); a('s_cbranch_scc1 L_end')
        a('s_and_b32 s4, s2, 7'); a('s_lshr_b32 s5, s2, 3')
        lane = self.lane = v.alloc('lane'); t0 = v.alloc('t0'); t1 = v.alloc('t1'); t2 = v.alloc('t2'); t3 = v.alloc('t3')
        self.t = [t0, t1, t2, t3]
        a(f'v_lshrrev_b32 {t0}, 6, v0'); a(f'v_and_b32 {lane}, 63, v0'); a(f'v_readfirstlane_b32 s6, {t0}')
        a('s_mul_i32 s10, s4, 28'); a('s_min_u32 s3, s5, 27'); a('s_add_u32 s10, s10, s3')
        a(f'v_mov_b32 {t0}, 0'); a(f'v_lshlrev_b32 {t1}, 2, {lane}'); a(f'v_add_u32 {t1}, {L_FL}, {t1}'); a(f'ds_write_b32 {t1}, {t0}'); a(f'ds_write_b32 {t1}, {t0} offset:256')
        a(f'v_and_b32 v0, 255, v0')
        a('s_cmp_lt_u32 s6, 4'); a('s_cbranch_scc0 L_g1')

    def g0_kgen(self):
        a = self.a; v = self.v; t0, t1, t2, t3 = self.t; lane = self.lane
        par = v.alloc('par', 6)
        a(f'v_and_b32 {t1}, 1, {lane}'); a(f'v_mul_u32_u24 {t1}, {KVS}, {t1}'); a(f'v_add_u32 {t1}, {L_KV}, {t1}'); a(f'ds_write_b32 {t1}, {t0}')
        a('s_lshl_b32 s15, s10, 10'); a(f'v_lshl_add_u32 {t1}, v0, 2, s15'); a('s_lshl_b32 s12, s10, 2')
        a('s_waitcnt lgkmcnt(0)')
        for k in range(6): a(f'global_load_dword {par[k]}, {t1}, s[{18+2*k}:{19+2*k}] nt')
        a('s_load_dword s7, s[50:51], 0')
        a('s_load_dword s13, s[30:31], s12'); a('s_load_dword s14, s[32:33], s12')
        a('s_barrier')
        self.roles_cd()
        a('s_waitcnt lgkmcnt(0)'); a('s_add_u32 s7, s7, 1')
        a('s_cmp_lt_u32 s5, 28'); a('s_cbranch_scc1 L_isconv'); a('s_waitcnt vmcnt(0)'); self.helper_warm(); a('s_branch L_g0b'); a('L_isconv:')
        ex = self.ex = v.alloc('ex', 9)
        kr_src = self.kr_src = v.alloc('kr_src'); kr_dst = self.kr_dst = v.alloc('kr_dst'); kr_st = self.kr_st = v.alloc('kr_st')
        t4 = v.alloc('t4'); t5 = v.alloc('t5'); dt = v.alloc('dt')
        a('s_lshl_b32 s15, s13, 16'); a('s_and_b32 s3, s13, 0xffff0000'); a('s_cmp_lt_u32 s6, 2'); a('s_cselect_b32 s15, s15, s3')
        a(f'v_mov_b32 {t0}, s15'); a(f'v_mul_f32 {t1}, 0x{LOG2E:x}, {t0}')
        a(f's_mov_b32 s3, 0x{LOG2E:x}'); a(f'v_fma_f32 {t2}, {t0}, s3, -{t1}')
        a(f'v_fmac_f32 {t2}, 0x32a57060, {t0}')
        a(f'v_exp_f32 {t1}, {t1}'); a(f'v_mul_f32 {t2}, 0x3f317218, {t2}'); a(f'v_fmac_f32 {t1}, {t1}, {t2}')
        a(f'v_cvt_pk_bf16_f32 {dt}, {t1}, {t1}'); a(f'v_and_b32 {dt}, 0xffff0000, {dt}')
        a(f'v_lshlrev_b32 {t0}, 3, v0'); a(f'v_sub_u32 {t0}, 2047, {t0}')
        a(f'v_cmp_lt_u32 vcc, 256, {t0}'); a(f'v_mov_b32 {t3}, {L_KV+4}')
        for m in range(9):
            a(f'v_subrev_u32 {ex[m]}, {m}, {t0}'); a(f'v_cvt_f32_i32 {t1}, {ex[m]}'); a(f'v_cvt_pk_bf16_f32 {t1}, {t1}, {t1}')
            a(f'v_lshrrev_b32 {t1}, 16, {t1}'); a(f'v_subrev_u32 {t1}, 0x4280, {t1}')
            a(f'v_cndmask_b32 {ex[m]}, {ex[m]}, {t1}, vcc'); a(f'v_lshl_add_u32 {ex[m]}, {ex[m]}, 2, {t3}')
        a(f'v_lshrrev_b32 {t1}, 4, v0'); a(f'v_and_b32 {t2}, 15, v0')
        a(f'v_mul_u32_u24 {kr_src}, {KROW}, {t1}'); a(f'v_lshl_add_u32 {kr_src}, {t2}, 4, {kr_src}')
        a(f'v_and_b32 {t4}, 3, {t1}'); a(f'v_lshrrev_b32 {t1}, 2, {t1}'); a(f'v_lshl_add_u32 {t4}, {t1}, 3, {t4}')
        a(f'v_lshrrev_b32 {t1}, 3, {t2}'); a(f'v_lshl_add_u32 {t4}, {t1}, 2, {t4}')
        a(f'v_and_b32 {t2}, 7, {t2}'); a(f'v_lshlrev_b32 {t2}, 2, {t2}')
        a(f'v_mov_b32 {kr_dst}, {t4}'); a(f'v_mov_b32 {kr_st}, 8')
        a(f'v_cmp_le_u32 vcc, 8, {t4}'); a(f'v_add_u32 {t1}, 248, {t4}')
        a(f'v_cndmask_b32 {kr_dst}, {kr_dst}, {t1}, vcc'); a(f'v_cndmask_b32 {kr_st}, {kr_st}, 4, vcc')
        a(f'v_cmp_le_u32 vcc, 12, {t4}'); a(f'v_and_b32 {t1}, 1, {t4}'); a(f'v_bfe_u32 {t5}, {t4}, 1, 1')
        a(f'v_lshl_add_u32 {t1}, {t5}, 6, {t1}'); a(f'v_add_u32 {t1}, 384, {t1}')
        a(f'v_cndmask_b32 {kr_dst}, {kr_dst}, {t1}, vcc'); a(f'v_cndmask_b32 {kr_st}, {kr_st}, 2, vcc')
        a(f'v_cmp_le_u32 vcc, 16, {t4}'); a(f'v_lshlrev_b32 {t1}, 5, {t4}')
        a(f'v_cndmask_b32 {kr_dst}, {kr_dst}, {t1}, vcc'); a(f'v_cndmask_b32 {kr_st}, {kr_st}, 1, vcc')
        a(f'v_mad_u32_u24 {kr_dst}, {kr_st}, {t2}, {kr_dst}')
        a(f'v_lshl_add_u32 {kr_dst}, {kr_dst}, 2, {t3}'); a(f'v_lshlrev_b32 {kr_st}, 2, {kr_st}')
        v.free('t4', 't5')
        snap = v.snapshot()
        P = [v.alloc(f'p{k}', 2) for k in range(6)]
        S = [{n: v.alloc(f'{n}_{q}', 2) for n in ('k', 'z1', 'z2', 'z4', 'z8', 'zb', 'T', 'T2', 'U', 'U2', 'V')} for q in range(2)]
        e = v.alloc('e', 8, 2); dd = v.alloc('dd', 2); pk = v.alloc('pk', 8)
        a(f'v_mov_b32 {dd[0]}, {dt}'); a(f'v_mov_b32 {dd[1]}, {dt}')
        a('s_lshl_b32 s15, s6, 9'); a('s_mov_b32 m0, s15')
        a('s_waitcnt vmcnt(0)')
        self.stamp(1)
        for k in range(6):
            a(f'v_lshlrev_b32 {P[k][0]}, 16, {par[k]}'); a(f'v_and_b32 {P[k][1]}, 0xffff0000, {par[k]}')
        ar, ai, br, bi, cr, ci = P
        for x in (ar, ai, br, bi): a(f'v_pk_mul_f32 {x}, {x}, {dd}')
        for q in range(2): a(f'v_mul_f32 {ar[q]}, 0x{LOG2E:x}, {ar[q]}'); a(f'v_mul_f32 {ai[q]}, 0x{INV2PI:x}, {ai[q]}')
        for q in range(2):
            a(f'v_exp_f32 {e[q]}, {ar[q]}'); a(f'v_fract_f32 {e[2+q]}, {ai[q]}')
            a(f'v_mul_f32 {e[4+q]}, 0x43800000, {ar[q]}'); a(f'v_mul_f32 {e[6+q]}, 0x43800000, {ai[q]}')
        for q in range(2):
            a(f'v_cos_f32 {S[q]["z1"][0]}, {e[2+q]}'); a(f'v_sin_f32 {S[q]["z1"][1]}, {e[2+q]}')
            a(f'v_exp_f32 {e[4+q]}, {e[4+q]}'); a(f'v_fract_f32 {e[6+q]}, {e[6+q]}')
        for q in range(2):
            k = S[q]['k']
            a(f'v_mul_f32 {k[0]}, {cr[q]}, {br[q]}'); a(f'v_mul_f32 {k[1]}, {cr[q]}, {bi[q]}')
            a(f'v_mul_f32 {S[q]["z1"][0]}, {e[q]}, {S[q]["z1"][0]}'); a(f'v_mul_f32 {S[q]["z1"][1]}, {e[q]}, {S[q]["z1"][1]}')
            a(f'v_cos_f32 {S[q]["zb"][0]}, {e[6+q]}'); a(f'v_sin_f32 {S[q]["zb"][1]}, {e[6+q]}')
            a(f'v_fma_f32 {k[0]}, -{ci[q]}, {bi[q]}, {k[0]}'); a(f'v_fmac_f32 {k[1]}, {ci[q]}, {br[q]}')
        def cm(O, X, Z, T):
            for q in range(2): a(f'v_pk_mul_f32 {S[q][T]}, {S[q][X]}, {S[q][Z]} op_sel:[0,0] op_sel_hi:[1,0]')
            for q in range(2): a(f'v_pk_fma_f32 {S[q][O]}, {S[q][X]}, {S[q][Z]}, {S[q][T]} op_sel:[1,1,0] op_sel_hi:[0,1,1] neg_lo:[1,0,0]')
        st = {'n': 0, 'hi': False}
        def put(row, X, neg):
            ps = []
            for q in range(2):
                p = pk[st['n'] % 8]; st['n'] += 1; ps.append(p)
                a(f'v_cvt_pk_bf16_f32 {p}, {S[q][X][0]}, {"-" if neg else ""}{S[q][X][1]}')
            if row >= 30 and not st['hi']:
                a(f's_add_u32 m0, s15, {30*KROW}'); st['hi'] = True
            assert (row >= 30) == st['hi']
            for q in range(2): a(f'ds_write_addtid_b32 {ps[q]} offset:{(row - (30 if row >= 30 else 0))*KROW + 256*q}')
        cm('z2', 'z1', 'z1', 'T')
        for q in range(2): a(f'v_mul_f32 {S[q]["zb"][0]}, {e[4+q]}, {S[q]["zb"][0]}'); a(f'v_mul_f32 {S[q]["zb"][1]}, {e[4+q]}, {S[q]["zb"][1]}')
        put(0, 'k', True)
        cm('z4', 'z2', 'z2', 'T'); cm('U', 'k', 'z1', 'T2'); cm('z8', 'z4', 'z4', 'T'); put(1, 'U', True)
        a(f'v_mov_b32 {t0}, 0x3f80'); a(f'ds_write_addtid_b32 {t0} offset:{21*KROW}'); a(f'ds_write_addtid_b32 {t0} offset:{21*KROW+256}')
        put(22, 'z8', False)
        coarse = [(i, 'U', 'U', 'z1') for i in range(2, 8)]
        coarse += [(8, 'U', 'k', 'zb'), (12, 'U2', 'U', 'zb'), (9, 'U', 'U', 'z2'), (10, 'U', 'U', 'z2'), (11, 'U', 'U', 'z2'), (13, 'U', 'U2', 'z4'), (15, 'U', 'U', 'zb'),
                   (14, 'U2', 'U2', 'zb'), (16, 'U2', 'U2', 'zb'), (17, 'U2', 'U2', 'zb'), (18, 'U2', 'U2', 'zb'), (19, 'U2', 'U2', 'zb'), (20, 'U2', 'U2', 'zb')]
        pend = None
        j = 2
        for (row, O, X, Z) in coarse:
            cm(O, X, Z, 'T')
            if j <= 8: cm('V', 'z8' if j == 2 else 'V', 'z8', 'T2')
            put(row, O, True)
            if j <= 8: put(21 + j, 'V', False); j += 1
        for j in range(9, 32):
            cm('V', 'V', 'z8', 'T'); put(21 + j, 'V', False)
        self.stamp3(2)
        v.restore(snap); v.free('dt', 'par')
        fa = v.alloc('fa', 64, 4); fb = v.alloc('fb', 64, 4); acc = v.alloc('kacc', 16, 4)
        a(f'v_and_b32 {t0}, 31, {lane}'); a(f'v_mul_u32_u24 {t0}, {KROW}, {t0}'); a(f'v_lshrrev_b32 {t1}, 5, {lane}')
        a(f'v_lshlrev_b32 {t1}, 4, {t1}'); a(f'v_add3_u32 {t0}, {t0}, {t1}, s15')
        rd = lambda ks: (a(f'ds_read_b128 {fa[4*ks:4*ks+4]}, {t0} offset:{32*ks}'), a(f'ds_read_b128 {fb[4*ks:4*ks+4]}, {t0} offset:{21*KROW+32*ks}'))
        for ks in range(6): rd(ks)
        for ks in range(16):
            a(f's_waitcnt lgkmcnt({2*min(5, 15-ks)})')
            a(f'v_mfma_f32_32x32x16_bf16 {acc}, {fa[4*ks:4*ks+4]}, {fb[4*ks:4*ks+4]}, {acc if ks else 0}')
            if ks + 6 < 16: rd(ks + 6)
        a('s_mov_b32 m0, s15')
        self.p4addr()
        for r in range(12): a(f'ds_write_addtid_b32 {acc[r]} offset:{r*KROW}')
        v.free('fa', 'fb', 'kacc')
        self.stamp(3)

    def g1_front(self):
        a = self.a; v = self.v; t0, t1, t2, t3 = self.t; lane = self.lane
        wd = self.wrow = v.alloc('wd', 16)
        snap = v.snapshot()
        dummy = v.alloc('dummy', 4)
        a('s_mul_i32 s11, s4, 21'); a('s_add_u32 s11, s11, s5')
        a('s_cmp_ge_u32 s6, 6'); a('s_cbranch_scc0 L_nopf')
        a('s_getpc_b64 s[8:9]'); a('L_pc:')
        a(f's_sub_u32 s8, s8, L_pc-{NAME}_kernel'); a('s_subb_u32 s9, s9, 0')
        a('s_sub_u32 s15, s6, 6'); a('s_lshl_b32 s15, s15, 5'); a('s_add_u32 s15, s15, s5'); a('s_lshl_b32 s15, s15, 10'); a(f'v_lshl_add_u32 {t0}, {lane}, 4, s15')
        a(f'v_min_u32 {t0}, L_code_end-{NAME}_kernel-16, {t0}')
        a(f'global_load_dwordx4 {dummy}, {t0}, s[8:9]')
        a('L_nopf:')
        cs = v.alloc('cs', 4); wm = v.alloc('wm', 16, 4); row = v.alloc('row', 8, 4); xp = v.alloc('xp', 16, 4)
        ga0 = v.alloc('ga0'); ga1 = v.alloc('ga1'); xa0 = v.alloc('xa0'); xa1 = v.alloc('xa1'); wa = v.alloc('wa')
        for k in range(4): a(f'v_mov_b32 {cs[k]}, 0')
        for k in range(8): a(f'v_mov_b32 {row[k]}, 0')
        a('s_and_b32 s3, s11, 3'); a('s_mul_i32 s3, s3, 112'); a(f'v_lshrrev_b32 {ga0}, 3, v0'); a(f'v_add_u32 {ga0}, s3, {ga0}'); a(f'v_lshlrev_b32 {ga1}, 1, {ga0}')
        a(f'v_mul_u32_u24 {ga0}, 5376, {ga0}'); a(f'v_and_b32 {t2}, 7, v0'); a(f'v_lshlrev_b32 {t2}, 4, {t2}')
        a('s_lshr_b32 s15, s11, 2'); a('s_lshl_b32 s15, s15, 7'); a(f'v_add3_u32 {ga0}, {ga0}, {t2}, s15')
        a(f'v_and_b32 {t2}, 3, v0'); a(f'v_mul_u32_u24 {xa0}, 1792, {t2}'); a(f'v_and_b32 {t0}, 252, v0'); a('s_mul_i32 s3, s2, 7168'); a(f'v_add3_u32 {xa0}, {xa0}, {t0}, s3')
        a('s_lshl_b32 s15, s6, 1'); a('s_sub_u32 s15, s15, 8'); a('s_mul_i32 s15, s15, 896'); a('s_add_u32 s3, s3, s15'); a(f'v_lshl_add_u32 {t3}, {lane}, 4, s3')
        a('s_cmp_lt_u32 s6, 6'); a('s_movk_i32 s15, 512'); a('s_cselect_b32 s15, 768, s15'); a(f'v_add_u32 {xa1}, s15, {xa0}'); a('s_cselect_b32 s9, 0, 0x40000000')
        a('s_cmp_lt_u32 s5, 21'); a('s_cselect_b32 s8, 0, 0x40000000'); a('s_or_b32 s9, s9, s8')
        a('s_and_b32 s3, s10, 3'); a(f's_mul_i32 s3, s3, {112*3584}'); a('s_lshr_b32 s15, s10, 3'); a('s_lshl_b32 s15, s15, 7'); a('s_add_u32 s15, s15, s3')
        a(f'v_lshrrev_b32 {wa}, 4, v0'); a(f'v_min_u32 {wa}, 13, {wa}'); a(f'v_mul_u32_u24 {wa}, {8*3584}, {wa}')
        a(f'v_and_b32 {t1}, 15, v0'); a(f'v_lshlrev_b32 {t1}, 3, {t1}'); a(f'v_add3_u32 {wa}, {wa}, {t1}, s15')
        a('s_waitcnt lgkmcnt(0)')
        self.srd(52, 44, 448*5376); self.srd(56, 42, 896)
        for i in range(4):
            a(f's_add_u32 s3, {"s8" if i < 3 else "s9"}, {32*5376*i}'); a(f'buffer_load_dwordx4 {wm[4*i:4*i+4]}, {ga0}, s[52:55], s3 offen nt')
        for i in range(4): a(f'buffer_load_short_d16_hi {cs[i]}, {ga1}, s[56:59], {"s8" if i < 3 else "s9"} offen offset:{64*i}')
        for u in range(4):
            ad, o = (xa0, 256*u) if u < 3 else (xa1, 0)
            a(f'global_load_dword {xp[4*u]}, {ad}, s[16:17] offset:{o} nt'); a(f'global_load_dword {xp[4*u+2]}, {ad}, s[16:17] offset:{o+896} nt')
        a('s_mov_b32 exec_hi, 0x00ffffff'); a(f'global_load_dwordx4 {row[0:4]}, {t3}, s[16:17] nt'); a(f'global_load_dwordx4 {row[4:8]}, {t3}, s[16:17] offset:896 nt'); a('s_mov_b32 exec_hi, -1')
        a('s_load_dword s7, s[50:51], 0')
        a('s_barrier')
        a('s_bitcmp1_b32 s10, 2'); a('s_cselect_b32 s60, s38, s36'); a('s_cselect_b32 s61, s39, s37')
        a(f's_mov_b32 s62, {448*3584}'); a('s_mov_b32 s63, 0x20000')
        tt = v.alloc('tt', 8, 4); acc = v.alloc('gacc', 8, 4); gs = v.alloc('gs')
        a('s_mul_i32 s3, s2, 14336'); a(f's_add_u32 s3, s3, {WS_XT}'); a(f'v_lshl_add_u32 {tt[0]}, v0, 4, s3')
        a(f'v_add_u32 {tt[1]}, 4096, {tt[0]}'); a(f'v_add_u32 {tt[2]}, 8192, {tt[0]}')
        a('s_cmp_lt_u32 s6, 6'); a('s_movk_i32 s3, 8192'); a('s_cselect_b32 s3, 12288, s3'); a(f'v_add_u32 {tt[3]}, s3, {tt[0]}')
        a(f'v_and_b32 {gs}, 7, {lane}'); a(f'v_lshlrev_b32 {gs}, 5, {gs}'); a(f'v_lshrrev_b32 {t1}, 5, {lane}'); a(f'v_lshl_add_u32 {gs}, {t1}, 4, {gs}')
        a(f'v_bfe_u32 {t1}, {lane}, 4, 1'); a(f'v_lshl_add_u32 {gs}, {t1}, 3, {gs}')
        a(f's_lshl_b32 s3, s6, 8'); a(f's_add_u32 s3, s3, {L_GS - 1024}'); a(f'v_add_u32 {gs}, s3, {gs}')
        a('s_waitcnt lgkmcnt(0)'); a('s_add_u32 s7, s7, 1')
        for k in range(8): a(f'v_mov_b32 {xp[2*k+1]}, s7')
        a('s_setprio 2')
        a('s_waitcnt vmcnt(10)')
        self.stamp(1)
        a('s_cmp_lt_u32 s5, 21'); a('s_cbranch_scc0 L_nog1')
        sl = [t0, t1, t2, t3]
        for i in range(4): a(f'v_mul_f32 {sl[i]}, 0xbfb8aa3b, {cs[i]}')
        for i in range(4): a(f'v_exp_f32 {sl[i]}, {sl[i]}')
        for i in range(4): a(f'v_add_f32 {sl[i]}, 1.0, {sl[i]}')
        for i in range(4): a(f'v_rcp_f32 {sl[i]}, {sl[i]}')
        for k in range(4):
            a(f'v_lshlrev_b32 {acc[2*k]}, 16, {wm[k]}'); a(f'v_and_b32 {acc[2*k+1]}, 0xffff0000, {wm[k]}')
        for i in range(4): a(f'v_mul_f32 {sl[i]}, {sl[i]}, {cs[i]}')
        for i in (0, 2):
            a(f'v_cvt_pk_bf16_f32 {sl[i]}, {sl[i]}, {sl[i+1]}'); a(f'v_lshlrev_b32 {cs[i]}, 16, {sl[i]}'); a(f'v_and_b32 {cs[i+1]}, 0xffff0000, {sl[i]}')
        for k in range(4): a(f'v_pk_mul_f32 {acc[2*k:2*k+2]}, {acc[2*k:2*k+2]}, {cs[0:2]} op_sel:[0,0] op_sel_hi:[1,0]')
        for i in range(1, 4):
            for k in range(4):
                w_ = wm[4*i+k]; pr = R('v', sl[2*(k & 1)].i, 2)
                a(f'v_lshlrev_b32 {pr[0]}, 16, {w_}'); a(f'v_and_b32 {pr[1]}, 0xffff0000, {w_}')
                h = i & 1
                a(f'v_pk_fma_f32 {acc[2*k:2*k+2]}, {pr}, {cs[2*(i>>1):2*(i>>1)+2]}, {acc[2*k:2*k+2]} op_sel:[0,{h},0] op_sel_hi:[1,{h},1]')
        for k in range(4): a(f'v_permlane32_swap_b32 {acc[k]}, {acc[4+k]}')
        for k in range(4): a(f'v_add_f32 {acc[k]}, {acc[k]}, {acc[4+k]}')
        for k in range(2): a(f'v_permlane16_swap_b32 {acc[k]}, {acc[2+k]}')
        for k in range(2): a(f'v_add_f32 {acc[k]}, {acc[k]}, {acc[2+k]}')
        for k in range(2): a(f'v_add_f32_dpp {acc[k]}, {acc[k]}, {acc[k]} row_ror:8 row_mask:0xf bank_mask:0xf')
        a(f'ds_write_b64 {gs}, {acc[0:2]}')
        a('L_nog1:')
        a('s_waitcnt vmcnt(0)')
        self.stamp(2)
        for u in range(4): a(f'global_store_dwordx4 {tt[u]}, {xp[4*u:4*u+4]}, s[50:51] sc1')
        st = acc
        for k in range(4): a(f'v_mov_b32 {st[k]}, 0')
        for k in range(4):
            for r in range(2): a(f'v_dot2c_f32_bf16 {st[2*r]}, 0x3f803f80, {row[4*r+k]}'); a(f'v_dot2c_f32_bf16 {st[2*r+1]}, {row[4*r+k]}, {row[4*r+k]}')
        for d in ['row_shr:1 row_mask:0xf', 'row_shr:2 row_mask:0xf', 'row_shr:4 row_mask:0xf', 'row_shr:8 row_mask:0xf', 'row_bcast:15 row_mask:0xa', 'row_bcast:31 row_mask:0xc']:
            for k in range(4): a(f'v_add_f32_dpp {st[k]}, {st[k]}, {st[k]} {d} bank_mask:0xf')
        self.sd_from(st[0], st[1]); self.sd_from(st[2], st[3])
        a(f's_lshl_b32 s3, s6, 3'); a(f's_add_u32 s3, s3, {L_SS - 32}'); a(f'v_mov_b32 {t0}, s3')
        a(f'v_cvt_pk_bf16_f32 {st[0]}, {st[0]}, {st[1]}'); a(f'v_cvt_pk_bf16_f32 {st[1]}, {st[2]}, {st[3]}')
        a('s_mov_b32 exec_lo, 0'); a('s_mov_b32 exec_hi, 0x80000000'); a(f'ds_write_b64 {t0}, {st[0:2]}'); a('s_mov_b64 exec, -1')
        a('s_sub_u32 s15, s6, 4'); self.ldsflag_set(L_FL + 64, 's15', t0, t1)
        g = wm
        a('s_cmp_lt_u32 s6, 6'); a('s_cbranch_scc0 L_nofin')
        self.ldsflag_wait(L_FL + 64, g[0:4], t0)
        a('s_cmp_eq_u32 s6, 5'); a('s_cbranch_scc1 L_stfin')
        a('s_cmp_lt_u32 s5, 21'); a('s_cbranch_scc0 L_nofin')
        a(f'v_lshlrev_b32 {t0}, 2, {lane}'); a(f'v_add_u32 {t0}, {L_GS}, {t0}')
        for w in range(4): a(f'ds_read_b32 {g[2*w]}, {t0} offset:{256*w}')
        a('s_and_b32 s3, s11, 3'); a(f's_mul_i32 s3, s3, {MODS}'); a('s_lshr_b32 s15, s11, 2'); a('s_lshl_b32 s15, s15, 9'); a('s_add_u32 s3, s3, s15')
        a(f's_add_u32 s3, s3, {WS_MOD}'); a(f'v_lshl_add_u32 {t0}, {lane}, 3, s3'); a(f'v_mov_b32 {g[1]}, s7')
        a('s_waitcnt lgkmcnt(0)')
        a(f'v_add_f32 {g[0]}, {g[0]}, {g[2]}'); a(f'v_add_f32 {g[4]}, {g[4]}, {g[6]}'); a(f'v_add_f32 {g[0]}, {g[0]}, {g[4]}')
        a(f'global_store_dwordx2 {t0}, {g[0:2]}, s[50:51] sc1')
        a('s_branch L_nofin')
        a('L_stfin:')
        a(f'v_lshlrev_b32 {t0}, 2, {lane}'); a(f'v_add_u32 {t0}, {L_SS}, {t0}'); a('s_mov_b64 exec, 0xff')
        a(f'ds_read_b32 {g[0]}, {t0}'); a(f'v_mov_b32 {g[1]}, s7'); a('s_lshl_b32 s3, s2, 6'); a(f's_add_u32 s3, s3, {WS_STATS}')
        a(f'v_lshl_add_u32 {t0}, {lane}, 3, s3'); a('s_waitcnt lgkmcnt(0)')
        a(f'global_store_dwordx2 {t0}, {g[0:2]}, s[50:51] sc1'); a('s_mov_b64 exec, -1')
        a('L_nofin:')
        a('s_setprio 0')
        self.stamp(3)
        self.ifconv('L_norp')
        for i in range(8):
            if i: a(f's_mov_b32 s3, {3584*i}')
            a(f'buffer_load_dwordx2 {wd[2*i:2*i+2]}, {wa}, s[60:63], {"s3" if i else "0"} offen nt')
        o = v.alloc('wo', 16, 4)
        a('s_mov_b32 s8, 0x05040100'); a('s_mov_b32 s9, 0x07060302')
        a('s_lshr_b32 s3, s10, 3'); a(f's_mul_i32 s3, s3, {4*SLOT}'); a('s_bfe_u32 s15, s10, 0x10002'); a('s_mul_i32 s15, s15, 14592'); a('s_add_u32 s3, s3, s15')
        a('s_and_b32 s15, s10, 3'); a('s_mul_i32 s15, s15, 896'); a('s_add_u32 s3, s3, s15'); a(f's_add_u32 s3, s3, {WS_WP}')
        a(f'v_bfe_u32 {t2}, v0, 2, 2'); a(f'v_mul_u32_u24 {t2}, {SLOT}, {t2}'); a(f'v_lshrrev_b32 {t3}, 4, v0'); a(f'v_lshl_add_u32 {t2}, {t3}, 6, {t2}')
        a(f'v_cmp_gt_u32 vcc, 14, {t3}'); a(f'v_and_b32 {t3}, 3, v0'); a(f'v_lshlrev_b32 {t3}, 4, {t3}'); a(f'v_add3_u32 {t2}, {t2}, {t3}, s3'); a(f'v_add_u32 {t3}, {2*3648}, {t2}')
        a('s_waitcnt vmcnt(0)')
        self.stamp3(5)
        for c in range(4):
            for m in range(4): a(f'v_perm_b32 {o[4*c+m]}, {wd[4*m+2+(c>>1)]}, {wd[4*m+(c>>1)]}, {"s9" if c & 1 else "s8"}')
        a('s_mov_b64 s[8:9], vcc')
        a('s_mov_b64 exec, s[8:9]')
        for c in range(4): a(f'global_store_dwordx4 {t2 if c < 2 else t3}, {o[4*c:4*c+4]}, s[50:51] offset:{3648*(c&1)} sc1')
        a('s_mov_b64 exec, -1')
        a('L_norp:')
        self.stamp3(6)
        self.roles_cd()
        v.restore(snap)

    def sync4(self, addr, idx, tmp4, va, vb):
        self.ldsflag_set(addr, idx, va, vb); self.ldsflag_wait(addr, tmp4, va)

    def p4addr(self):
        a = self.a; v = self.v; t0, t1, t2, t3 = self.t; lane = self.lane
        xt = self.xt = v.alloc('xt', 16, 4); sg = self.sg = v.alloc('sg', 16, 4); ms = self.ms = v.alloc('ms', 4, 4)
        xa = self.xa = v.alloc('xa', 4); sa_ = self.sa_ = v.alloc('sa_', 4); ma = self.ma = v.alloc('ma')
        a(f'v_lshrrev_b32 {t0}, 2, v0'); a(f'v_mul_u32_u24 {xa[0]}, 14336, {t0}'); a(f'v_and_b32 {t0}, 3, v0'); a(f'v_lshl_add_u32 {xa[0]}, {t0}, 4, {xa[0]}')
        a('s_lshl_b32 s3, s10, 6'); a(f's_add_u32 s3, s3, {WS_XT}'); a(f'v_add_u32 {xa[0]}, s3, {xa[0]}')
        a(f'v_lshlrev_b32 {sa_[0]}, 4, v0'); a(f'v_add_u32 {sa_[0]}, {WS_STATS}, {sa_[0]}')
        for u in range(1, 4): a(f'v_add_u32 {xa[u]}, {64*14336*u}, {xa[0]}'); a(f'v_add_u32 {sa_[u]}, {4096*u}, {sa_[0]}')
        a(f'v_bfe_u32 {t0}, {lane}, 2, 2'); a(f'v_bfe_u32 {t1}, {lane}, 3, 1'); a(f'v_and_b32 {t1}, {t1}, {t0}'); a(f'v_add_u32 {t0}, {t0}, {t1}'); a(f'v_mul_u32_u24 {t0}, 3584, {t0}')
        a(f'v_and_b32 {t1}, 3, {lane}'); a(f'v_mul_u32_u24 {t1}, {MODS}, {t1}')
        a('s_lshl_b32 s3, s10, 4'); a(f's_add_u32 s3, s3, {WS_MOD}'); a(f'v_add3_u32 {ma}, {t0}, {t1}, s3')

    def g0_front(self):
        a = self.a; v = self.v; t0, t1, t2, t3 = self.t; lane = self.lane; ex = self.ex
        xt, sg, ms = self.xt, self.sg, self.ms
        p = v.alloc('kp', 32, 4)
        a(f'v_add_u32 {t1}, {self.kr_dst}, {self.kr_st}'); a(f'v_add_u32 {t2}, {t1}, {self.kr_st}'); a(f'v_add_u32 {t3}, {t2}, {self.kr_st}')
        self.ldsflag_set(L_FL + 160, 's6', t0, p[0])
        self.stamp3(5)
        self.ldsflag_wait(L_FL + 160, p[0:4], t0)
        self.stamp3(6)
        a('s_cmp_lt_u32 s6, 3'); a('s_cbranch_scc0 L_nokr')
        for w in range(4): a(f'ds_read_b128 {p[4*w:4*w+4]}, {self.kr_src} offset:{512*w}')
        for ch in range(2):
            a(f's_waitcnt lgkmcnt({2 if ch == 0 else 4})')
            for e, ad in enumerate([self.kr_dst, t1, t2, t3]):
                a(f'v_add_f32 {p[8*ch+e]}, {p[8*ch+e]}, {p[8*ch+4+e]}'); a(f'ds_write_b32 {ad}, {p[8*ch+e]} offset:{KVS*ch}')
        a('L_nokr:')
        self.stamp3(7)
        self.ldsflag_set(L_FL + 192, 's6', t0, t1)
        self.p4loads()
        self.ldsflag_wait(L_FL + 192, p[0:4], t0)
        self.stamp(4)
        kv = p
        for ch in range(2):
            for m in range(9): a(f'ds_read_b32 {kv[9*ch+m]}, {ex[m]} offset:{KVS*ch}')
        o = v.alloc('eo', 16, 4)
        a(f'v_mov_b32 {t2}, 0'); a(f'v_mov_b32 {t3}, 0')
        a('s_cmp_eq_u32 s6, 3'); a('s_cbranch_scc0 L_nz1')
        a(f'v_lshrrev_b32 {t1}, 2, {lane}'); a(f'v_and_b32 {t1}, 3, {t1}'); a(f'v_mul_u32_u24 {t1}, 4160, {t1}')
        a(f'v_and_b32 {o[0]}, 3, {lane}'); a(f'v_lshl_add_u32 {t1}, {o[0]}, 3, {t1}')
        a(f'ds_write_b64 {t1}, {R("v", t2.i, 2)} offset:{L_KP+4096}')
        a(f'v_min_u32 {t1}, 59, {lane}'); a(f'v_lshlrev_b32 {t1}, 3, {t1}')
        a(f'ds_write_b64 {t1}, {R("v", t2.i, 2)} offset:{L_H}'); a(f'ds_write_b64 {t1}, {R("v", t2.i, 2)} offset:{L_H+4576}')
        a('L_nz1:')
        a(f'v_lshlrev_b32 {t1}, 4, v0')
        a('s_waitcnt lgkmcnt(0)')
        for ch in range(2):
            for m in range(4):
                a(f'v_cvt_pk_bf16_f32 {o[8*ch+m]}, {kv[9*ch+2*m]}, {kv[9*ch+2*m+1]}'); a(f'v_cvt_pk_bf16_f32 {o[8*ch+4+m]}, {kv[9*ch+2*m+1]}, {kv[9*ch+2*m+2]}')
            a(f'ds_write_b128 {t1}, {o[8*ch:8*ch+4]} offset:{L_KP+8320*ch}'); a(f'ds_write_b128 {t1}, {o[8*ch+4:8*ch+8]} offset:{L_KP+8320*ch+4160}')
        self.stamp3(8)
        self.poll(self.p4loads, lambda: self.tagcheck([xt[2*i+1] for i in range(8)] + [sg[2*i+1] for i in range(8)] + [ms[1], ms[3]]), preissued=True, sleep=1)
        self.stamp(5); self.stamp3(9)
        self.ldsflag_set(L_FL + 144, 's6', t0, t1)
        h = p
        self.quadsum_round(ms[0], ms[2])
        a(f'v_add_f32 {ms[1]}, 1.0, {ms[0]}'); a(f'v_add_f32 {ms[3]}, 1.0, {ms[2]}'); self.rbf(ms[1]); self.rbf(ms[3])
        a(f'v_readlane_b32 s8, {ms[0]}, 0'); a(f'v_readlane_b32 s9, {ms[2]}, 0'); a(f'v_readlane_b32 s30, {ms[1]}, 4'); a(f'v_readlane_b32 s31, {ms[3]}, 4')
        a(f'v_readlane_b32 s12, {ms[0]}, 8'); a(f'v_readlane_b32 s13, {ms[2]}, 8'); a(f'v_readlane_b32 s28, {ms[1]}, 12'); a(f'v_readlane_b32 s29, {ms[3]}, 12')
        for i in range(8):
            g = sg[2*i]; mu = sg[2*i+1]
            a(f'v_lshlrev_b32 {mu}, 16, {g}'); a(f'v_and_b32 {g}, 0xffff0000, {g}'); a(f'v_rcp_f32 {g}, {g}')
        a(f'v_mov_b32 {ms[0]}, s30'); a(f'v_mov_b32 {ms[1]}, s31'); a(f'v_mov_b32 {ms[2]}, s8'); a(f'v_mov_b32 {ms[3]}, s9')
        for i in range(8):
            x = xt[2*i]; H = h[2*i:2*i+2]; G = sg[2*i:2*i+2]
            a(f'v_lshlrev_b32 {H[0]}, 16, {x}'); a(f'v_and_b32 {H[1]}, 0xffff0000, {x}')
            a(f'v_pk_add_f32 {H}, {H}, {G} op_sel:[0,1] op_sel_hi:[1,1] neg_lo:[0,1] neg_hi:[0,1]')
            a(f'v_pk_mul_f32 {H}, {H}, {G} op_sel:[0,0] op_sel_hi:[1,0]')
            a(f'v_pk_fma_f32 {H}, {H}, {ms[0:2]}, {ms[2:4]}')
        a(f'v_lshlrev_b32 {t1}, 2, v0'); a(f'v_lshlrev_b32 {t2}, 3, v0')
        for u in range(4):
            a(f'v_cvt_pk_bf16_f32 {h[16+2*u]}, {h[4*u]}, {h[4*u+2]}'); a(f'v_cvt_pk_bf16_f32 {h[17+2*u]}, {h[4*u+1]}, {h[4*u+3]}')
            a(f'ds_write_b32 {t1}, {h[16+2*u]} offset:{L_H+480+1024*u}'); a(f'ds_write_b32 {t1}, {h[17+2*u]} offset:{L_H+4576+480+1024*u}')
            a(f'ds_write2_b32 {t2}, {xt[4*u]}, {xt[4*u+2]} offset0:{0} offset1:{1}' if False else f'v_mov_b32 {xt[4*u+1]}, {xt[4*u+2]}')
            a(f'ds_write_b64 {t2}, {xt[4*u:4*u+2]} offset:{L_XR+2048*u}')
        self.stamp3(10)
        self.sync4(L_FL + 208, 's6', p[24:28], t0, t1)
        self.stamp(6)
        v.free('ex', 'kr_src', 'kr_dst', 'kr_st', 'xt', 'sg', 'ms', 'xa', 'sa_', 'ma', 'kp', 'eo')

    def p4loads(self):
        a = self.a; xt, sg, ms, xa, sa_, ma = self.xt, self.sg, self.ms, self.xa, self.sa_, self.ma
        for u in range(4): a(f'global_load_dwordx4 {xt[4*u:4*u+4]}, {xa[u]}, s[50:51] sc1')
        for u in range(4): a(f'global_load_dwordx4 {sg[4*u:4*u+4]}, {sa_[u]}, s[50:51] sc1')
        a(f'global_load_dwordx4 {ms}, {ma}, s[50:51] sc1')

    def roles_cd(self):
        a = self.a
        a('s_lshr_b32 s16, s4, 2'); a('s_lshl_b32 s16, s16, 3'); a('s_lshr_b32 s3, s5, 2'); a('s_add_u32 s16, s16, s3')
        a('s_and_b32 s17, s4, 3'); a('s_lshl_b32 s17, s17, 2'); a('s_and_b32 s3, s5, 3'); a('s_add_u32 s17, s17, s3')
        a('s_mul_i32 s3, s5, 37'); a('s_lshr_b32 s3, s3, 8'); a('s_lshl_b32 s18, s4, 2'); a('s_add_u32 s18, s18, s3')
        a('s_mul_i32 s3, s3, 7'); a('s_sub_u32 s19, s5, s3')
        self.wsrd(52, WS_X1S, 224*8192); self.wsrd(36, WS_X1, 224*8192)
        a(f's_mul_i32 s3, s17, {7*SLOT}'); a(f's_add_u32 s3, s3, {WS_WP}')
        a('s_add_u32 s56, s50, s3'); a('s_addc_u32 s57, s51, 0'); a(f's_mov_b32 s58, {7*SLOT}'); a('s_mov_b32 s59, 0x20000')
        self.srd(20, 40, 1792*896); self.wsrd(24, WS_HH, 64*112*1024)

    def conv(self):
        a = self.a; v = self.v; t0, t1, t2, t3 = self.t; lane = self.lane
        snap = v.snapshot()
        if 'prio' in self.opt: a('s_setprio 2')
        acc = v.alloc('cacc', 32, 4); FA = [v.alloc('fa0', 32, 4), v.alloc('fa1', 32, 4)]; FB = [v.alloc('fb0', 32, 4), v.alloc('fb1', 32, 4)]
        aa = v.alloc('aaddr', 4); ba = v.alloc('baddr')
        a('s_lshr_b32 s15, s6, 1'); a('s_and_b32 s3, s6, 1')
        a(f'v_and_b32 {t0}, 15, {lane}'); a(f'v_lshrrev_b32 {t1}, 4, {lane}')
        a(f'v_lshrrev_b32 {t2}, 1, {t0}'); a(f'v_lshlrev_b32 {t3}, 2, {t1}'); a(f'v_sub_u32 {t2}, {t3}, {t2}'); a(f'v_lshlrev_b32 {t2}, 2, {t2}')
        a(f'v_and_b32 {t3}, 1, {t0}'); a(f'v_mul_u32_u24 {t3}, 4160, {t3}'); a(f'v_sub_u32 {t2}, {t2}, {t3}')
        a('s_mul_i32 s8, s15, 8320'); a('s_lshl_b32 s9, s3, 8'); a('s_sub_u32 s8, s8, s9')
        a(f's_add_u32 s8, s8, {L_KP + 4160 + (1015 - 128)*4 - 192}')
        a(f'v_add_u32 {aa[0]}, s8, {t2}')
        for i in range(1, 4): a(f'v_subrev_u32 {aa[i]}, {1024*i}, {aa[0]}')
        a(f'v_lshlrev_b32 {t2}, 5, {t0}'); a(f'v_lshl_add_u32 {t2}, {t1}, 4, {t2}')
        a('s_mul_i32 s8, s15, 4576'); a('s_sub_u32 s8, s8, s9'); a(f's_add_u32 s8, s8, {L_H + 448 - 192}')
        a(f'v_add_u32 {ba}, s8, {t2}')
        def lA(it, buf, aidx):
            base = aa[aidx // 2]; off = (128 if aidx % 2 == 0 else 0) + 48 - 16*it
            return [f'ds_read2_b32 {FA[buf][4*aidx:4*aidx+2]}, {base} offset0:{off} offset1:{off+1}',
                    f'ds_read2_b32 {FA[buf][4*aidx+2:4*aidx+4]}, {base} offset0:{off+2} offset1:{off+3}']
        def lB(it, buf, b): return [f'ds_read_b128 {FB[buf][4*b:4*b+4]}, {ba} offset:{512*b + 192 - 64*it}']
        def loads(it, buf):
            out = []
            for i in range(8): out += lA(it, buf, 7 - i) + lB(it, buf, i)
            return out
        for x in loads(0, 0): a(x)
        touched = set()
        DEADLINE = 2 if 'dl2' in self.opt else 3
        for it in range(4):
            buf = it & 1
            nxt = loads(it + 1, buf ^ 1) if it < 3 else []
            n = 0; cnt = 0
            if it == DEADLINE: a(f'v_mov_b32 {t2}, {L_LV}'); a(f'v_mov_b32 {t3}, 1'); a(f'ds_write_b32 {t2}, {t3}')
            for i in range(8):
                aidx = 7 - i
                if it == 0: a(f's_waitcnt lgkmcnt({min(15, 21 - 3*i + n)})')
                elif i == 0: a('s_waitcnt lgkmcnt(0)')
                for b in range(8 - aidx):
                    c = aidx + b
                    a(f'v_mfma_f32_16x16x32_bf16 {acc[4*c:4*c+4]}, {FA[buf][4*aidx:4*aidx+4]}, {FB[buf][4*b:4*b+4]}, {acc[4*c:4*c+4] if c in touched else 0}')
                    touched.add(c); cnt += 1
                    if n < len(nxt) and (it > 0 or cnt > 10): a(nxt[n]); n += 1
            assert n == len(nxt), (it, n)
        v.free('fa0', 'fa1', 'fb0', 'fb1', 'aaddr', 'baddr')
        self.stamp(7)
        xr = v.alloc('xr', 8, 4); hr = v.alloc('hr', 8, 2); y = v.alloc('y', 32, 4); fl = v.alloc('fl', 4, 4); ta = v.alloc('ta', 2); exa = v.alloc('exa')
        a(f'v_lshlrev_b32 {ta[0]}, 4, {t0}'); a(f'v_lshl_add_u32 {ta[0]}, {t1}, 2, {ta[0]}'); a('s_lshl_b32 s8, s6, 9'); a(f'v_add_u32 {ta[0]}, s8, {ta[0]}')
        a(f'v_lshlrev_b32 {t2}, 1, {ta[0]}'); a(f'v_lshlrev_b32 {ta[0]}, 2, {ta[0]}')
        for u in range(2):
            a(f'ds_read_b128 {xr[4*u:4*u+4]}, {ta[0]} offset:{L_XR + 1024*u}')
            a(f'ds_read_b64 {hr[4*u:4*u+2]}, {t2} offset:{L_H + 480 + 512*u}'); a(f'ds_read_b64 {hr[4*u+2:4*u+4]}, {t2} offset:{L_H + 4576 + 480 + 512*u}')
        a(f's_lshl_b32 s8, s6, 13'); a(f'v_lshl_add_u32 {exa}, {lane}, 4, s8')
        for c in range(8): a(f'ds_write_b128 {exa}, {acc[4*c:4*c+4]} offset:{L_EX + 1024*c}')
        self.ldsflag_set(L_FL, 's6', t2, t3)
        a('s_lshl_b32 s8, s14, 16'); a('s_and_b32 s9, s14, 0xffff0000')
        a(f's_lshl_b32 s15, s10, 13'); a(f's_add_u32 s15, s15, {WS_X1}'); a(f'v_add_u32 {ta[0]}, s15, {ta[0]}'); a(f'v_add_u32 {ta[1]}, {WS_X1S - WS_X1}, {ta[0]}')
        a(f's_lshl_b32 s3, s6, 11'); a(f'v_lshl_add_u32 {exa}, {lane}, 4, s3')
        a('s_waitcnt lgkmcnt(9)')
        pre = v.alloc('pre', 16, 4)
        a(f'v_mov_b32 {t2}, s8'); a(f'v_mov_b32 {t3}, s9'); a(f'v_mul_f32 {t2}, s12, {t2}'); a(f'v_mul_f32 {t3}, s13, {t3}')
        for u in range(2):
            for e in range(4):
                p0 = pre[8*u+e]; p1 = pre[8*u+4+e]; hh0 = hr[4*u + e//2]; hh1 = hr[4*u + 2 + e//2]
                a(f'v_lshlrev_b32 {p0}, 16, {xr[4*u+e]}'); a(f'v_and_b32 {p1}, 0xffff0000, {xr[4*u+e]}')
                if e % 2 == 0: a(f'v_lshlrev_b32 {fl[0]}, 16, {hh0}'); a(f'v_lshlrev_b32 {fl[1]}, 16, {hh1}')
                else: a(f'v_and_b32 {fl[0]}, 0xffff0000, {hh0}'); a(f'v_and_b32 {fl[1]}, 0xffff0000, {hh1}')
                a(f'v_fmac_f32 {p0}, {t2}, {fl[0]}'); a(f'v_fmac_f32 {p1}, {t3}, {fl[1]}')
        self.ldsflag_wait(L_FL, fl, t3)
        for u in range(2):
            for w in range(4): a(f'ds_read_b128 {y[16*u+4*w:16*u+4*w+4]}, {exa} offset:{L_EX + 8192*w + 1024*u}')
        for u in range(2):
            a(f's_waitcnt lgkmcnt({4 if u == 0 else 0})')
            Y = y[16*u:16*u+16]; P = pre[8*u:8*u+8]
            for e in range(4):
                a(f'v_add_f32 {Y[e]}, {Y[e]}, {Y[4+e]}'); a(f'v_add_f32 {Y[8+e]}, {Y[8+e]}, {Y[12+e]}')
            for e in range(4):
                a(f'v_fmac_f32 {P[e]}, s12, {Y[e]}'); a(f'v_fmac_f32 {P[4+e]}, s13, {Y[8+e]}')
            for e in range(4): a(f'v_cvt_pk_bf16_f32 {Y[e]}, {P[e]}, {P[4+e]}')
            for e in range(4):
                a(f'v_lshlrev_b32 {P[e]}, 16, {Y[e]}'); a(f'v_and_b32 {P[4+e]}, 0xffff0000, {Y[e]}')
                a(f'v_mul_f32 {P[e]}, s28, {P[e]}'); a(f'v_mul_f32 {P[4+e]}, s29, {P[4+e]}')
            for e in range(4): a(f'v_cvt_pk_bf16_f32 {Y[4+e]}, {P[e]}, {P[4+e]}')
            a(f'global_store_dwordx4 {ta[1]}, {Y[4:8]}, s[50:51] offset:{1024*u} sc1')
            a(f'global_store_dwordx4 {ta[0]}, {Y[0:4]}, s[50:51] offset:{1024*u} sc1')
        if 'prio' in self.opt: a('s_setprio 0')
        self.stamp(8)
        a('s_mul_i32 s3, s6, 224'); a('s_add_u32 s3, s3, s10'); a('s_lshl_b32 s3, s3, 7'); a(f's_add_u32 s3, s3, {WS_FLAGX}')
        a(f'v_mov_b32 {t0}, s3'); a(f'v_mov_b32 {t1}, s7')
        a('s_waitcnt vmcnt(0)'); a('s_mov_b64 exec, 1'); a(f'global_store_dword {t0}, {t1}, s[50:51] sc1'); a('s_mov_b64 exec, -1')
        v.restore(snap)

    def dma(self, slot_lds, tile, ntiles, voff):
        a = self.a
        nb = ntiles * SLOT; n = (nb + 1023) // 1024; per = (n + 3) // 4
        L = a.label('dma')
        a('s_sub_u32 s15, s6, 4'); a('s_lshl_b32 s15, s15, 10')
        for i in range(per):
            a(f's_add_u32 m0, s15, {slot_lds + 4096*i}'); a(f's_add_u32 s3, s15, {tile*SLOT + 4096*i}')
            full = n - 4*i
            if full < 4:
                a(f's_cmp_lt_u32 s6, {4 + full}'); a(f's_cbranch_scc0 {L}')
            if 4*i + 4 > n - 1 and nb % 1024:
                a(f's_cmp_eq_u32 s6, {4 + (n - 1 - 4*i)}'); a('s_cselect_b32 exec_hi, 0, -1')
            a(f'buffer_load_dwordx4 {voff}, s[56:59], s3 offen sc1 lds')
        a(f'{L}:')
        a('s_mov_b32 exec_hi, -1')

    def g1_mid(self):
        a = self.a; v = self.v; t0, t1, t2, t3 = self.t; lane = self.lane
        self.WA = v.at('WA', 128, 128); self.va = va = v.at('va', 127); wq = self.wq = self.s.alloc('wq'); a(f's_sub_u32 {self.wq}, s6, 4')
        snap = v.snapshot()
        dum = v.alloc('dum'); l16 = v.alloc('l16'); a(f'v_lshlrev_b32 {l16}, 4, {lane}')
        a(f'v_lshrrev_b32 {t0}, 5, {lane}'); a(f'v_bfe_u32 {t1}, {lane}, 3, 1'); a(f'v_lshl_add_u32 {t0}, {t1}, 1, {t0}'); a(f'v_mul_u32_u24 {va}, {7*14336}, {t0}')
        a(f'v_bfe_u32 {t0}, {lane}, 4, 1'); a(f'v_mul_u32_u24 {t0}, 896, {t0}')
        a(f'v_and_b32 {t1}, 7, {lane}'); a(f'v_lshlrev_b32 {t1}, 4, {t1}'); a(f'v_add3_u32 {va}, {va}, {t0}, {t1}')
        a('s_lshl_b32 s15, s19, 7'); a(f's_mul_i32 s3, {wq}, {28*14336}'); a('s_add_u32 s15, s15, s3'); a(f'v_add_u32 {va}, s15, {va}')
        self.NPRE = 8
        tmp = v.alloc('ptmp', 4, 4); w = self.wrow; WA = self.WA
        rs0 = v.at('rs0', 92, 32)
        raw = lambda lv: rs0 if lv == 3 else WA[32*(lv+1):32*(lv+1)+32]
        a('s_setprio 2')
        self.ifconv('L_noc')
        mg = v.alloc('mg', 16, 4); f = v.alloc('wf', 32, 4); c12 = v.alloc('c12', 8, 4)
        a(f'v_lshrrev_b32 {t0}, 2, v0'); a(f'v_min_u32 {t0}, 55, {t0}'); a(f'v_and_b32 {t2}, 3, v0'); a(f'v_mul_u32_u24 {t2}, {MODS}, {t2}'); a(f'v_lshl_add_u32 {t2}, {t0}, 4, {t2}')
        a('s_and_b32 s3, s10, 3'); a('s_mul_i32 s3, s3, 896'); a(f's_add_u32 s3, s3, {WS_MOD + 3*3584}'); a(f'v_add_u32 {t2}, s3, {t2}')
        def ld():
            a(f'global_load_dwordx4 {mg[0:4]}, {t2}, s[50:51] sc1'); a(f'global_load_dwordx4 {mg[4:8]}, {t2}, s[50:51] offset:3584 sc1')
        ld()
        a('s_waitcnt vmcnt(2)')
        self.ldsflag_set(L_FL + 224, wq, t1, t3)
        a('s_cmp_eq_u32 s6, 4'); a('s_cbranch_scc0 L_nowf')
        self.ldsflag_wait(L_FL + 224, c12[0:4], t1)
        a('s_lshl_b32 s15, s10, 7'); a(f's_add_u32 s15, s15, {WS_FLAGW}')
        a(f'v_mov_b32 {t1}, s15'); a(f'v_mov_b32 {t3}, s7'); a('s_mov_b64 exec, 1')
        a(f'global_store_dword {t1}, {t3}, s[50:51] sc1'); a('s_mov_b64 exec, -1')
        a('L_nowf:')
        self.stamp(4)
        self.poll(ld, lambda: self.tagcheck([mg[1], mg[3], mg[5], mg[7]]), preissued=True)
        self.quadsum_round(mg[0], mg[2]); self.quadsum_round(mg[4], mg[6])
        a(f'v_add_f32 {mg[4]}, 1.0, {mg[4]}'); a(f'v_add_f32 {mg[6]}, 1.0, {mg[6]}'); self.rbf(mg[4]); self.rbf(mg[6])
        a(f'v_lshlrev_b32 {t0}, 3, {t0}'); a(f'v_add_u32 {t0}, {L_MODV}, {t0}')
        a(f'ds_write2_b32 {t0}, {mg[0]}, {mg[2]} offset0:0 offset1:1'); a(f'ds_write2_b32 {t0}, {mg[4]}, {mg[6]} offset0:112 offset1:113')
        self.ldsflag_set(L_FL + 128, wq, t1, t3)
        self.ldsflag_wait(L_FL + 144, tmp, t0)
        for lv in range(4): self.wdraw(lv, raw(lv))
        a('L_noc:')
        self.stamp(7)
        a('s_mul_i32 s15, s17, 7'); a('s_lshr_b32 s15, s15, 2'); a('s_lshl_b32 s15, s15, 3')
        a(f'v_min_u32 {t0}, 23, {lane}'); a(f'v_add_u32 {t0}, s15, {t0}'); a(f'v_min_u32 {t0}, 223, {t0}'); a(f'v_lshlrev_b32 {t0}, 7, {t0}'); a(f'v_add_u32 {t0}, {WS_FLAGW}, {t0}')
        self.poll(lambda: a(f'global_load_dword {t1}, {t0}, s[50:51] sc1'), lambda: a(f'v_cmp_ne_u32 vcc, s7, {t1}'), sleep=2)
        self.stamp(6)
        a('s_mov_b32 s31, 0')
        self.ifconv('L_early')
        self.ldsflag_wait(L_FL + 208, tmp, t0)
        a(f'v_mov_b32 {t0}, {L_LV}'); a(f'ds_read_b32 {t1}, {t0}'); a('s_waitcnt lgkmcnt(0)'); a(f'v_readfirstlane_b32 s3, {t1}')
        a('s_cmp_eq_u32 s3, 0'); a('s_cbranch_scc0 L_late')
        a('L_early:')
        self.dma(SLOTS[0], 0, 3, l16)
        a('s_mov_b32 s31, 1')
        a('L_late:')
        self.stamp(5)
        self.ifconv('L_noc3')
        a('s_setprio 0')
        for i in range(8):
            for k in range(2):
                a(f'v_lshlrev_b32 {f[8*(2*k)+i]}, 16, {w[2*i+k]}'); a(f'v_and_b32 {f[8*(2*k+1)+i]}, 0xffff0000, {w[2*i+k]}')
        a(f'v_lshrrev_b32 {t0}, 4, v0'); a(f'v_cmp_gt_u32 s[8:9], 14, {t0}'); a(f'v_min_u32 {t0}, 13, {t0}'); a(f'v_lshlrev_b32 {t0}, 5, {t0}'); a(f'v_add_u32 {t0}, {L_MODV}, {t0}')
        self.ldsflag_wait(L_FL + 128, mg[0:4], t1)
        for k in range(2):
            a(f'ds_read_b128 {mg[4*k:4*k+4]}, {t0} offset:{16*k}'); a(f'ds_read_b128 {mg[8+4*k:12+4*k]}, {t0} offset:{448+16*k}')
        a('s_waitcnt lgkmcnt(0)')
        for i in range(8):
            for c in range(4):
                op = 'mul' if i == 0 else 'fmac'
                a(f'v_{op}_f32 {c12[c]}, {mg[8+i]}, {f[8*c+i]}'); a(f'v_{op}_f32 {c12[4+c]}, {mg[i]}, {f[8*c+i]}')
        for k in range(8): a(f'v_cndmask_b32 {c12[k]}, 0, {c12[k]}, s[8:9]')
        for sw in ['v_permlane16_swap_b32', 'v_permlane32_swap_b32']:
            for k in range(8): a(f'v_mov_b32 {f[k]}, {c12[k]}')
            for k in range(8): a(f'{sw} {c12[k]}, {f[k]}')
            for k in range(8): a(f'v_add_f32 {c12[k]}, {c12[k]}, {f[k]}')
        a('s_sub_u32 s15, s6, 4'); a('s_lshl_b32 s3, s15, 9'); a(f's_add_u32 s3, s3, {L_CS}'); a(f'v_lshl_add_u32 {t1}, {lane}, 5, s3')
        a('s_mov_b64 exec, 0xffff'); a(f'ds_write_b128 {t1}, {c12[0:4]}'); a(f'ds_write_b128 {t1}, {c12[4:8]} offset:16'); a('s_mov_b64 exec, -1')
        self.ldsflag_set(L_FL + 16, 's15', t1, t3)
        a('s_cmp_lt_u32 s6, 6'); a('s_cbranch_scc0 L_noc3')
        self.ldsflag_wait(L_FL + 16, f[0:4], t1)
        a('s_sub_u32 s15, s6, 4'); a(f'v_lshrrev_b32 {t1}, 5, {lane}'); a(f'v_lshl_add_u32 {t1}, s15, 1, {t1}')
        a(f'v_and_b32 {t2}, 3, {lane}'); a(f'v_lshl_add_u32 {t3}, {t1}, 2, {t2}'); a(f'v_lshlrev_b32 {t3}, 5, {t3}')
        a(f'v_and_b32 {t2}, 28, {lane}'); a(f'v_add3_u32 {t3}, {t3}, {t2}, 0'); a(f'v_add_u32 {t3}, {L_CS}, {t3}')
        for k in range(4): a(f'ds_read_b32 {f[2*k]}, {t3} offset:{512*k}')
        a('s_and_b32 s3, s10, 3'); a('s_mul_i32 s3, s3, 57344'); a('s_lshr_b32 s15, s10, 3'); a('s_lshl_b32 s15, s15, 11'); a('s_add_u32 s3, s3, s15')
        a('s_bfe_u32 s15, s10, 0x10002'); a('s_lshl_b32 s15, s15, 8'); a('s_add_u32 s3, s3, s15'); a(f's_add_u32 s3, s3, {WS_C12}')
        a(f'v_lshlrev_b32 {t1}, 9, {t1}'); a(f'v_and_b32 {t2}, 31, {lane}'); a(f'v_lshlrev_b32 {t2}, 3, {t2}'); a(f'v_add3_u32 {t1}, {t1}, {t2}, s3')
        a(f'v_mov_b32 {f[1]}, s7')
        a('s_waitcnt lgkmcnt(0)')
        a(f'v_add_f32 {f[0]}, {f[0]}, {f[2]}'); a(f'v_add_f32 {f[4]}, {f[4]}, {f[6]}'); a(f'v_add_f32 {f[0]}, {f[0]}, {f[4]}')
        a(f'global_store_dwordx2 {t1}, {f[0:2]}, s[50:51] sc1')
        v.free('mg', 'wf', 'c12')
        a('L_noc3:')
        a('s_setprio 2')
        self.stamp(8)
        a('s_barrier')
        a('s_cmp_eq_u32 s31, 1'); a('s_cbranch_scc1 L_done02')
        self.dma(SLOTS[0], 0, 3, l16)
        a('L_done02:')
        self.dma(SLOTS[3], 3, 2, l16)
        a(f'v_min_u32 {t2}, 223, v0'); a(f'v_lshlrev_b32 {t2}, 13, {t2}')
        a('s_and_b32 s3, s5, 3'); a('s_lshl_b32 s3, s3, 7'); a('s_lshl_b32 s15, s16, 9'); a('s_add_u32 s62, s15, s3')
        if 'spec' in self.opt: a(f'buffer_load_dword {dum}, {t2}, s[52:55], s62 offen sc1')
        xs = v.alloc('xs', 8, 4)
        a(f'v_lshrrev_b32 {t0}, 3, {lane}'); a(f'v_lshlrev_b32 {t0}, 13, {t0}'); a(f'v_and_b32 {t1}, 7, {lane}'); a(f'v_lshl_add_u32 {t0}, {t1}, 2, {t0}')
        a('s_sub_u32 s15, s6, 4'); a(f's_mul_i32 s15, s15, {56*8192}'); a('s_lshl_b32 s3, s16, 9'); a('s_add_u32 s15, s15, s3'); a('s_lshl_b32 s3, s17, 5'); a('s_add_u32 s15, s15, s3')
        a(f'v_add_u32 {t0}, s15, {t0}')
        a(f'v_min_u32 {t2}, 55, {lane}'); a('s_sub_u32 s15, s6, 4'); a('s_mul_i32 s15, s15, 56'); a(f'v_add_u32 {t2}, s15, {t2}')
        a('s_lshr_b32 s3, s16, 2'); a('s_mul_i32 s3, s3, 224'); a(f'v_add_u32 {t3}, s3, {t2}'); a(f'v_lshlrev_b32 {t3}, 7, {t3}'); a(f'v_add_u32 {t3}, {WS_FLAGX}, {t3}')
        a(f'v_lshlrev_b32 {t2}, 13, {t2}')
        a('s_and_b32 s3, s5, 3'); a('s_lshl_b32 s3, s3, 7'); a('s_lshl_b32 s15, s16, 9'); a('s_add_u32 s62, s15, s3')
        a('s_mov_b64 s[8:9], 0')
        def ckx():
            if 'xwarm' not in self.opt:
                a(f'v_cmp_ne_u32 vcc, s7, {t1}'); return
            L = a.label('nw')
            a(f'v_cmp_ne_u32 vcc, s7, {t1}'); a('s_nor_b64 s[60:61], vcc, s[8:9]'); a(f's_cbranch_scc0 {L}')
            a('s_mov_b64 exec, s[60:61]'); a(f'buffer_load_dword {xs[7]}, {t2}, s[52:55], s62 offen sc1'); a('s_mov_b64 exec, -1')
            a('s_or_b64 s[8:9], s[8:9], s[60:61]')
            a(f'{L}:')
        self.poll(lambda: a(f'global_load_dword {t1}, {t3}, s[50:51] sc1'), ckx, sleep=1)
        for i in range(7):
            a(f's_mov_b32 s15, {i*8*8192}'); a(f'buffer_load_dword {xs[i]}, {t0}, s[36:39], s15 offen sc1')
        self.stamp(9)
        a('s_barrier')
        a('s_waitcnt vmcnt(0)')
        sq = v.alloc('sq', 4, 4)
        a(f'v_mov_b32 {sq[0]}, 0'); a(f'v_mov_b32 {sq[1]}, 0')
        for i in range(7):
            a(f'v_lshlrev_b32 {t0}, 16, {xs[i]}'); a(f'v_and_b32 {t1}, 0xffff0000, {xs[i]}')
            a(f'v_add_f32 {sq[0]}, {sq[0]}, {t0}'); a(f'v_fmac_f32 {sq[1]}, {t0}, {t0}'); a(f'v_add_f32 {sq[0]}, {sq[0]}, {t1}'); a(f'v_fmac_f32 {sq[1]}, {t1}, {t1}')
        for k in range(2): a(f'v_add_f32_dpp {sq[k]}, {sq[k]}, {sq[k]} row_ror:8 row_mask:0xf bank_mask:0xf')
        for sw in ['v_permlane16_swap_b32', 'v_permlane32_swap_b32']:
            for k in range(2): a(f'v_mov_b32 {sq[2+k]}, {sq[k]}')
            for k in range(2): a(f'{sw} {sq[k]}, {sq[2+k]}')
            for k in range(2): a(f'v_add_f32 {sq[k]}, {sq[k]}, {sq[2+k]}')
        a('s_sub_u32 s15, s6, 4'); a('s_lshl_b32 s3, s15, 6'); a(f's_add_u32 s3, s3, {L_S2}'); a(f'v_lshl_add_u32 {t1}, {lane}, 3, s3')
        a('s_mov_b64 exec, 0xff'); a(f'ds_write_b64 {t1}, {sq[0:2]}'); a('s_mov_b64 exec, -1')
        self.ldsflag_set(L_FL + 32, 's15', t1, t3)
        a('s_cmp_eq_u32 s6, 4'); a('s_cbranch_scc0 L_nos2')
        self.ldsflag_wait(L_FL + 32, xs[0:4], t1)
        a(f'v_and_b32 {t1}, 7, {lane}'); a(f'v_lshlrev_b32 {t2}, 3, {t1}'); a(f'v_add_u32 {t2}, {L_S2}, {t2}')
        for k in range(4): a(f'ds_read_b64 {xs[2*k:2*k+2]}, {t2} offset:{64*k}')
        a('s_lshl_b32 s15, s16, 4'); a('s_add_u32 s15, s15, s17'); a('s_lshl_b32 s15, s15, 7'); a(f's_add_u32 s15, s15, {WS_ST2}'); a(f'v_lshl_add_u32 {t1}, {t1}, 4, s15')
        a('s_waitcnt lgkmcnt(0)')
        for k in range(2):
            a(f'v_add_f32 {xs[k]}, {xs[k]}, {xs[2+k]}'); a(f'v_add_f32 {xs[4+k]}, {xs[4+k]}, {xs[6+k]}'); a(f'v_add_f32 {xs[k]}, {xs[k]}, {xs[4+k]}')
        self.sd_from(xs[0], xs[1]); self.rbf(xs[1]); a(f'v_rcp_f32 {sq[2]}, {xs[1]}')
        a(f'v_mov_b32 {sq[1]}, s7'); a(f'v_mov_b32 {sq[3]}, s7'); a(f'v_mul_f32 {sq[0]}, {xs[0]}, {sq[2]}'); a(f'v_sub_f32 {sq[0]}, 0, {sq[0]}')
        a('s_mov_b64 exec, 0xff'); a(f'global_store_dwordx4 {t1}, {sq}, s[50:51] sc1'); a('s_mov_b64 exec, -1')
        a('L_nos2:')
        a(f'v_min_u32 {t0}, 223, v0'); a(f's_mul_i32 s15, s17, 3584'); a(f's_add_u32 s15, s15, {WS_C12}'); a(f'v_lshl_add_u32 {t1}, {t0}, 4, s15')
        a(f'v_bfe_u32 {t2}, v0, 2, 5'); a(f'v_and_b32 {t3}, 3, v0'); a(f'v_mul_u32_u24 {t3}, {MODS}, {t3}'); a(f'v_lshl_add_u32 {t3}, {t2}, 4, {t3}')
        a('s_min_u32 s15, s19, 6'); a('s_lshl_b32 s15, s15, 9'); a(f's_add_u32 s15, s15, {WS_MOD + 5*3584}'); a(f'v_add_u32 {t3}, s15, {t3}')
        cp4 = v.alloc('cp4', 12, 4); ca3 = v.alloc('ca3', 3)
        for k in range(3): a(f'v_add_u32 {ca3[k]}, {57344*(k+1)}, {t1}')
        def ldc():
            a(f'global_load_dwordx4 {xs[0:4]}, {t1}, s[50:51] sc1'); a(f'global_load_dwordx4 {xs[4:8]}, {t3}, s[50:51] sc1')
            for k in range(3): a(f'global_load_dwordx4 {cp4[4*k:4*k+4]}, {ca3[k]}, s[50:51] sc1')
        self.poll(ldc, lambda: self.tagcheck([xs[1], xs[3], xs[5], xs[7]] + [cp4[2*k+1] for k in range(6)]))
        for e in (0, 2):
            a(f'v_add_f32 {xs[e]}, {xs[e]}, {cp4[e]}'); a(f'v_add_f32 {cp4[4+e]}, {cp4[4+e]}, {cp4[8+e]}'); a(f'v_add_f32 {xs[e]}, {xs[e]}, {cp4[4+e]}')
        a(f'v_lshlrev_b32 {t0}, 3, {t0}'); a(f'v_add_u32 {t0}, {L_C12}, {t0}'); a(f'ds_write2_b32 {t0}, {xs[0]}, {xs[2]} offset0:0 offset1:1')
        self.quadsum_round(xs[4], xs[6])
        a(f'v_lshlrev_b32 {t2}, 3, {t2}'); a(f'v_add_u32 {t2}, {L_GB}, {t2}'); a(f'ds_write2_b32 {t2}, {xs[4]}, {xs[6]} offset0:0 offset1:1')
        self.ifconv('L_noperm')
        a('s_setprio 0')
        a('s_mov_b32 s8, 0x05040100'); a('s_mov_b32 s9, 0x07060302')
        for lv in range(4): self.wdperm(raw(lv), WA[32*lv:32*lv+32], tmp)
        a('s_setprio 2')
        a('L_noperm:')
        a('s_waitcnt lgkmcnt(0)')
        v.restore(snap)

    def helper_warm(self):
        a = self.a; v = self.v; t0, t1, t2, t3 = self.t
        fl = v.alloc('hfl', 4, 4)
        self.ldsflag_wait(L_FL + 64, fl, t0)
        a('s_lshl_b32 s15, s4, 2'); a('s_add_u32 s15, s15, s5'); a('s_sub_u32 s15, s15, 28'); a(f's_mul_i32 s15, s15, {392*128}')
        a(f'v_lshlrev_b32 {t0}, 7, v0'); a(f'v_min_u32 {t1}, 135, v0'); a(f'v_lshlrev_b32 {t1}, 7, {t1}'); a(f'v_add_u32 {t1}, 32768, {t1}')
        a(f'buffer_load_dword {fl[0]}, {t0}, s[20:23], s15 offen'); a(f'buffer_load_dword {fl[1]}, {t1}, s[20:23], s15 offen')
        a('s_waitcnt vmcnt(0)')
        v.free('hfl')

    def gemm1(self):
        a = self.a; v = self.v; t0, t1, t2, t3 = self.t; lane = self.lane
        snap = v.snapshot()
        X = v.alloc('X', 112, 4); ACC = [v.alloc(f'acc{i}', 16, 4) for i in range(5)]; AF = v.alloc('AF', 32, 4)
        vo = v.alloc('vo', 4); la = v.alloc('la', 2); st = v.alloc('st', 4, 4); hh = v.alloc('hho', 4, 4); ha = v.alloc('ha', 2); ca = v.alloc('ca'); sta = v.alloc('sta')
        a(f'v_lshrrev_b32 {t0}, 5, {lane}'); a(f'v_and_b32 {t1}, 31, {lane}'); a(f'v_lshlrev_b32 {vo[0]}, 15, {t0}'); a(f'v_lshl_add_u32 {vo[0]}, {t1}, 2, {vo[0]}')
        a('s_lshl_b32 s15, s16, 9'); a('s_lshl_b32 s3, s6, 7'); a('s_add_u32 s15, s15, s3'); a(f'v_add_u32 {vo[0]}, s15, {vo[0]}')
        for j in range(1, 4): a(f'v_add_u32 {vo[j]}, {8192*j}, {vo[0]}')
        a('s_lshl_b32 s15, s15, 2'); a(f's_add_u32 s15, s15, {WS_ST2}'); a(f'v_lshl_add_u32 {sta}, {t1}, 4, s15')
        a(f'v_bfe_u32 {t1}, {lane}, 4, 1'); a(f'v_mul_u32_u24 {la[0]}, 14592, {t1}'); a(f'v_bfe_u32 {t1}, {lane}, 2, 2'); a(f'v_mul_u32_u24 {t1}, 3648, {t1}')
        a(f'v_and_b32 {t2}, 3, {lane}'); a(f'v_lshlrev_b32 {t2}, 4, {t2}'); a(f'v_add3_u32 {la[0]}, {la[0]}, {t1}, {t2}'); a(f'v_lshl_add_u32 {la[0]}, {t0}, 6, {la[0]}')
        a(f'v_add_u32 {la[1]}, {SLOTS[0]}, {la[0]}')
        a(f'v_lshlrev_b32 {ca}, 4, {t0}'); a(f'v_add_u32 {ca}, {L_C12}, {ca}')
        a('s_lshl_b32 s15, s16, 2'); a('s_add_u32 s15, s15, s6'); a('s_mul_i32 s15, s15, 112'); a('s_mul_i32 s3, s17, 7'); a('s_add_u32 s15, s15, s3')
        a('s_lshl_b32 s15, s15, 10'); a(f's_add_u32 s15, s15, {WS_HH}'); a(f'v_lshl_add_u32 {ha[0]}, {lane}, 4, s15'); a(f'v_add_u32 {ha[1]}, 4096, {ha[0]}')
        a('s_lshl_b32 s15, s16, 4'); a('s_add_u32 s15, s15, s17'); a('s_lshl_b32 s15, s15, 2'); a('s_add_u32 s15, s15, s6'); a('s_lshl_b32 s15, s15, 7')
        a(f's_add_u32 s62, s15, {WS_FLAGH}'); a('s_lshl_b32 s63, s7, 3'); a('s_lshl_b32 s61, s6, 2'); a(f's_add_u32 s61, s61, {L_FL + 80}')
        a('s_barrier')
        self.stamp(9)
        def xload(ks):
            a(f's_mov_b32 s15, {ks*65536}')
            for j in range(4): a(f'buffer_load_dword {X[4*ks+j]}, {vo[j]}, s[52:55], s15 offen sc1')
        def aread(slot, ks, dst):
            b = SLOTS[slot]
            base, off = (la[1], b - SLOTS[0]) if b >= SLOTS[0] else (la[0], b)
            return f'ds_read_b128 {dst}, {base} offset:{off + ks*128}'
        PRE = int([o[3:] for o in self.opt if o.startswith('pre')][0]) if any(o.startswith('pre') for o in self.opt) else 5
        spread = 'spread' in self.opt
        for ks in range(PRE): xload(ks)
        for n in range(8): a(aread(n % 4, n // 4, AF[4*n:4*n+4]))
        for ks in range(28):
            issued = min(28, PRE + ks)
            extra = 1 if ks > 25 else 0
            for tl in range(4):
                n = 4*ks + tl; r = AF[4*(n % 8):4*(n % 8)+4]
                lg = 7 if n <= 108 else 7 - (n - 108)
                if tl == 0: a(f's_waitcnt vmcnt({4*(issued - ks - 1) + extra}) lgkmcnt({lg})')
                else: a(f's_waitcnt lgkmcnt({lg})')
                a(f'v_mfma_f32_32x32x16_bf16 {ACC[tl]}, {r}, {X[4*ks:4*ks+4]}, {ACC[tl] if ks else 0}')
                if ks < 26: a(aread(tl, ks + 2, r))
                elif ks == 26: a(aread(4, tl, r))
                if PRE + ks < 28:
                    if not spread:
                        if tl == 0: xload(PRE + ks)
                    else:
                        if tl == 0: a(f's_mov_b32 s15, {(PRE+ks)*65536}')
                        a(f'buffer_load_dword {X[4*(PRE+ks)+tl]}, {vo[tl]}, s[52:55], s15 offen sc1')
                if tl == 3 and ks == 25: a(f'global_load_dwordx4 {st}, {sta}, s[50:51] sc1')
        a('s_barrier')
        self.stamp(10)
        rr, nm = st[2], st[0]
        a(f'v_mov_b32 {t0}, s62')
        def flag_ops(level, vm):
            return (f's_add_u32 s3, s63, {level}\nv_mov_b32 {t1}, s3\ns_waitcnt vmcnt({vm})\ns_mov_b64 exec, 1\n'
                    f'global_store_dword {t0}, {t1}, s[50:51] sc1\ns_mov_b64 exec, -1')
        def epi_groups(jt, acc):
            gs = []
            for g in range(2):
                def reads(C, g=g):
                    o = jt * 256 + 32 * g
                    return [f'ds_read_b128 {C[4*k:4*k+4]}, {ca} offset:{o + 64*k}' for k in range(4)]
                def comp(C, g=g):
                    ops = []
                    for e in range(4): ops += [f'v_fmac_f32 {C[4+e]}, {nm}, {C[e]}', f'v_fmac_f32 {C[12+e]}, {nm}, {C[8+e]}']
                    for e in range(4): ops += [f'v_fmac_f32 {C[4+e]}, {rr}, {acc[4*g+e]}', f'v_fmac_f32 {C[12+e]}, {rr}, {acc[8+4*g+e]}']
                    for e in range(4): ops += [f'v_mul_f32 {C[4+e]}, {C[4+e]}, {C[12+e]}']
                    ops += [f'v_cvt_pk_bf16_f32 {hh[2*g]}, {C[4]}, {C[5]}', f'v_cvt_pk_bf16_f32 {hh[2*g+1]}, {C[6]}, {C[7]}']
                    if g == 1:
                        ops += [f'global_store_dwordx4 {ha[jt // 4]}, {hh}, s[50:51] offset:{1024*(jt % 4)} sc1']
                    return ops
                gs.append((reads, comp))
            return gs
        C0 = AF[16:32]
        accof = [ACC[0], ACC[1], ACC[2], ACC[3], ACC[4], ACC[0], ACC[1]]
        groups = []
        for jt in range(7): groups += epi_groups(jt, accof[jt])
        alt = {2: ACC[0], 3: None, 4: None}
        cbuf = [C0, C0, ACC[0], C0, ACC[0], C0, ACC[1], C0, ACC[2], C0, ACC[2], C0, ACC[2], C0]
        stage_groups = {4: range(0, 6), 5: range(6, 10), 6: range(10, 12)}
        q = ['a'] * 4
        def lds(txt): a(txt); q.append('x'); return len(q) - 1
        def lwait(idx): a(f's_waitcnt lgkmcnt({min(15, len(q) - 1 - idx)})')
        rd = {}
        def issue_reads(gi):
            for x in groups[gi][0](cbuf[gi]): rd[gi] = lds(x)
        issue_reads(0)
        self.poll(lambda: a(f'global_load_dwordx4 {st}, {sta}, s[50:51] sc1'), lambda: self.tagcheck([st[1], st[3]]), preissued=True, sleep=1)
        self.stamp2(1)
        seq = [(4, 4, ACC[4]), (5, 0, ACC[0]), (6, 1, ACC[1])]
        flat = [(tile, slot, acc, ks) for (tile, slot, acc) in seq for ks in range(28)]
        pend = {i: i for i in range(4)}
        for n, (tile, slot, acc, ks) in enumerate(flat):
            if ks == 0:
                eops = []
                for gi in stage_groups[tile]:
                    if gi == 1: eops += [('rd', gi), ('gap', None), ('gap', None)]
                    eops += [('wait', gi)]
                    nx = gi + 1
                    body = [('v', x) for x in groups[gi][1](cbuf[gi])]
                    if nx != 1 and nx < 14:
                        pos = 16 if nx == 2 else 1
                        body = body[:pos] + [('rd', nx)] + body[pos:]
                    eops += body
                if tile == 6: eops = [('gap', None)]*6 + [('v', flag_ops(4, 1))] + eops
                ei = 0
            lwait(pend[n])
            r = AF[4*(n % 4):4*(n % 4)+4]
            a(f'v_mfma_f32_32x32x16_bf16 {acc}, {r}, {X[4*ks:4*ks+4]}, {acc if ks else 0}')
            if n + 4 < len(flat):
                t2_, s2_, _, k2 = flat[n + 4]
                if t2_ == 5 and k2 == 0: self.stamp2(2); a('s_barrier'); self.stamp2(3)
                pend[n + 4] = lds(aread(s2_, k2, r))
            if ks == 27 and tile < 6:
                a(f'v_mov_b32 {t2}, s61'); a(f'v_mov_b32 {t3}, 1'); lds(f'ds_write_b32 {t2}, {t3} offset:{16*(tile-4)}')
            want = (len(eops) * (ks + 1) + 26) // 27 if ks < 27 else len(eops)
            while ei < min(want, len(eops)):
                kind, x = eops[ei]; ei += 1
                if kind == 'rd': issue_reads(x)
                elif kind == 'wait': lwait(rd[x])
                elif kind == 'gap': break
                else: a(x)
        self.stamp2(4)
        self.stamp2(6)
        lwait(rd[12])
        body = groups[12][1](cbuf[12])
        a(body[0]); issue_reads(13)
        for x in body[1:]: a(x)
        lwait(rd[13])
        for x in groups[13][1](cbuf[13]): a(x)
        self.stamp2(7)
        a(flag_ops(7, 0))
        a('s_cmp_lt_u32 s5, 28'); a('s_cbranch_scc0 L_nohw')
        a('s_lshr_b32 s15, s18, 1'); a('s_lshl_b32 s15, s15, 6'); a('s_and_b32 s3, s18, 1'); a('s_lshl_b32 s3, s3, 1'); a('s_add_u32 s15, s15, s3')
        a(f'v_bfe_u32 {t0}, {lane}, 1, 4'); a(f'v_and_b32 {t1}, 1, {lane}'); a(f'v_lshl_add_u32 {t0}, {t0}, 2, {t1}'); a(f'v_add_u32 {t0}, s15, {t0}')
        a(f'v_lshlrev_b32 {t0}, 7, {t0}'); a(f'v_add_u32 {t0}, {WS_FLAGH}, {t0}')
        a('s_cmp_eq_u32 s6, 0'); a('s_cbranch_scc0 L_nohw')
        def ck():
            a(f'v_subrev_u32 {t1}, s63, {t1}'); a(f'v_cmp_ne_u32 vcc, 7, {t1}')
        self.poll(lambda: a(f'global_load_dword {t1}, {t0}, s[50:51] sc1'), ck, sleep=1)
        a(f'v_mov_b32 {hh[2]}, {L_LV + 28}'); a(f'v_mov_b32 {hh[3]}, 1'); a(f'ds_write_b32 {hh[2]}, {hh[3]}')
        a('L_nohw:')
        a('s_branch L_fin')
        v.restore(snap)

    def hhline(self, e, x, y, jt0):
        a = self.a
        a(f'v_bfe_u32 {x}, {e}, 7, 1'); a(f'v_mul_u32_u24 {x}, {112*1024}, {x}'); a(f'v_bfe_u32 {y}, {e}, 3, 4'); a(f'v_mul_u32_u24 {y}, 7168, {y}'); a(f'v_add_u32 {x}, {x}, {y}')
        a(f'v_lshrrev_b32 {y}, 8, {e}'); a(f'v_lshlrev_b32 {y}, 10, {y}'); a(f'v_and_b32 {e}, 7, {e}'); a(f'v_lshlrev_b32 {e}, 7, {e}'); a(f'v_add3_u32 {e}, {e}, {x}, {y}')
        a(f's_mul_i32 s15, s18, {2*112*1024}'); a(f's_add_u32 s15, s15, {1024*jt0}')
    def tileA(self, sp): return 14*(sp & 1) + (sp >> 1)
    def wdraw(self, lv, dst):
        for i, ro in enumerate((0, 4, 8, 12, 2, 6, 10, 14)):
            self.a(f's_mov_b32 s15, {lv*14336 + ro*896}'); self.a(f'buffer_load_dwordx4 {dst[4*i:4*i+4]}, {self.va}, s[20:23], s15 offen')
    def wdperm(self, src, dst, tmp):
        a = self.a
        for c in range(4):
            sel = 's9' if c & 1 else 's8'
            for m in range(4):
                a(f'v_perm_b32 {dst[4*c+m]}, {src[8*m+4+(c>>1)]}, {src[8*m+(c>>1)]}, {sel}')
                a(f'v_perm_b32 {tmp[m]}, {src[8*m+4+(c>>1)]}, {src[8*m+(c>>1)]}, {sel}')
                a(f'v_perm_b32 {dst[16+4*c+m]}, {src[8*m+6+(c>>1)]}, {src[8*m+2+(c>>1)]}, {sel}')
            for m in range(4): a(f'v_mov_b32_dpp {dst[4*c+m]}, {dst[16+4*c+m]} row_ror:8 row_mask:0xf bank_mask:0xc')
            for m in range(4): a(f'v_mov_b32_dpp {dst[16+4*c+m]}, {tmp[m]} row_ror:8 row_mask:0xf bank_mask:0x3')

    def gemm2(self):
        a = self.a; v = self.v; t0, t1, t2, t3 = self.t; lane = self.lane
        v.free('wd')
        WA = self.WA; wq = self.wq; NPRE = self.NPRE
        ACC = v.at('acc', 8, 64); HB = v.at('HB', 72, 48); vb = v.alloc('vb', 2); fa = v.alloc('fa'); lw = v.alloc('lw'); dum = v.alloc('dum')
        a(f'v_lshrrev_b32 {t0}, 5, {lane}'); a(f'v_mul_u32_u24 {vb[0]}, 7168, {t0}'); a(f'v_bfe_u32 {t0}, {lane}, 4, 1'); a(f'v_lshlrev_b32 {t0}, 9, {t0}')
        a(f'v_and_b32 {t1}, 15, {lane}'); a(f'v_lshlrev_b32 {t1}, 4, {t1}'); a(f'v_add3_u32 {vb[0]}, {vb[0]}, {t0}, {t1}')
        a(f's_mul_i32 s15, s18, {2*112*1024}'); a(f's_mul_i32 s3, {wq}, {28*1024}'); a('s_add_u32 s15, s15, s3')
        a(f'v_add_u32 {vb[0]}, s15, {vb[0]}'); a(f'v_add_u32 {vb[1]}, {112*1024}, {vb[0]}')
        a('s_lshr_b32 s15, s18, 1'); a('s_lshl_b32 s15, s15, 6')
        a('s_and_b32 s3, s18, 1'); a('s_lshl_b32 s3, s3, 1'); a('s_add_u32 s15, s15, s3')
        a(f'v_bfe_u32 {t0}, {lane}, 1, 4'); a(f'v_and_b32 {t1}, 1, {lane}'); a(f'v_lshl_add_u32 {t0}, {t0}, 2, {t1}'); a(f'v_add_u32 {t0}, s15, {t0}')
        a(f'v_lshlrev_b32 {t0}, 7, {t0}'); a(f'v_add_u32 {fa}, {WS_FLAGH}, {t0}'); a('s_lshl_b32 s63, s7, 3')
        own = [SLOTS[3], SLOTS[2], SLOTS[4], SLOTS[0]]
        a(f's_mov_b32 s62, {own[0]}')
        for k in range(1, 4): a(f's_cmp_eq_u32 {wq}, {k}'); a(f's_cselect_b32 s62, {own[k]}, s62')
        a(f'v_lshl_add_u32 {lw}, {lane}, 4, s62')
        self.stamp2(1)
        a('s_barrier')
        self.stamp2(2)
        a(f'v_lshlrev_b32 {t2}, 4, {lane}')
        self.dma(SLOTS[0], 5, 2, t2)
        a('s_waitcnt vmcnt(0)')
        self.stamp2(3)
        a('s_barrier')
        self.ifconv('L_fin')
        a('s_setprio 0')
        tmp4 = HB[32:36]; OUT = R('v', HB.i, 32)
        RS = [ACC[0:32], ACC[32:64]]
        for k in range(2): self.wdraw(4 + k, RS[k])
        a(f's_cmp_lt_u32 {wq}, 2'); a('s_cbranch_scc1 L_slotok')
        a(f's_lshl_b32 s3, {wq}, 4'); a(f's_add_u32 s60, s3, {L_FL + 80 - 32}')
        self.ldsflag_wait('s60', tmp4, t0)
        a('L_slotok:')
        a('s_mov_b32 s8, 0x05040100'); a('s_mov_b32 s9, 0x07060302')
        for k in range(3):
            a(f's_waitcnt vmcnt({8 if k < 2 else 0}) lgkmcnt(0)')
            self.wdperm(RS[k & 1], OUT, tmp4)
            if k == 0: self.wdraw(6, RS[0])
            for c in range(8): a(f'ds_write_b128 {lw}, {OUT[4*c:4*c+4]} offset:{8192*k + 1024*c}')
        a('s_setprio 2')
        self.stamp2(4)
        def flagck(k):
            def ck():
                a(f'v_subrev_u32 {t1}, s63, {t1}'); a(f'v_subrev_u32 {t1}, {k}, {t1}'); a(f'v_cmp_lt_u32 vcc, {7-k}, {t1}')
            return ck
        fload = lambda: a(f'global_load_dword {t1}, {fa}, s[50:51] sc1')
        free = [HB[16*i:16*i+16] for i in range(3)]; hb = {}; vq = []
        def bload(n):
            r = hb[n] = free.pop(0)
            a(f's_mov_b32 s15, {self.tileA(n)*1024}')
            for u in range(4): a(f'buffer_load_dwordx4 {r[4*u:4*u+4]}, {vb[u >> 1]}, s[24:27], s15 offen offset:{256*(u & 1)} sc1')
            vq.extend([n]*4)
        def need(level):
            L = a.label('lv'); D = a.label('lvd'); cnt = self.s.alloc('spin')
            a(f's_mov_b32 {cnt}, 0'); a(f'v_mov_b32 {t0}, {L_LV + 4*level}')
            a(f'{L}:'); a(f'ds_read_b32 {t1}, {t0}'); a('s_waitcnt lgkmcnt(0)'); a(f'v_cmp_eq_u32 vcc, 0, {t1}'); a(f's_cbranch_vccz {D}')
            a(f's_add_u32 {cnt}, {cnt}, 1'); a(f's_cmp_lt_u32 {cnt}, {SPIN*20}'); a(f's_cbranch_scc1 {L}')
            a(f'{D}:'); self.s.free('spin')
        a('s_waitcnt lgkmcnt(0)')
        self.poll(fload, flagck(4), sleep=1)
        self.stamp(10)
        bload(0); bload(1); bload(2)
        nxt = 3; have = 4; stg = None; xe = None
        NEEDAT = 4
        def aread(n):
            r = stg[n & 1]
            for c in range(4): a(f'ds_read_b128 {r[4*c:4*c+4]}, {lw} offset:{4096*(n-NPRE) + 1024*c}')
        for n in range(14):
            idx = [i for i, e in enumerate(vq) if e == n]
            w = f'vmcnt({len(vq) - 1 - max(idx)})'
            if n >= NPRE: w += f' lgkmcnt({4 if n < 13 else 0})'
            a(f's_waitcnt {w}')
            wa = WA[16*n:16*n+16] if n < NPRE else stg[n & 1]
            for u in range(4):
                for c in range(4):
                    d = ACC[16*u+4*c:16*u+4*c+4]
                    a(f'v_mfma_f32_16x16x32_bf16 {d}, {wa[4*c:4*c+4]}, {hb[n][4*u:4*u+4]}, {d if n else 0}')
            free.append(hb[n])
            if n < NPRE: free.append(WA[16*n:16*n+16])
            if n >= NPRE and n + 2 < 14: aread(n + 2)
            while nxt < 14 and free and (nxt < 8 or n >= NEEDAT):
                if nxt >= 8 and have < 7: need(7); have = 7
                bload(nxt); nxt += 1
            if n == 3: self.stamp2(6)
            if n == 6:
                stg = [free.pop(0), free.pop(0)]; aread(NPRE); aread(NPRE + 1)
                xe = free.pop(0)
                a(f'v_bfe_u32 {t0}, {lane}, 4, 1'); a(f'v_lshlrev_b32 {t0}, 17, {t0}'); a(f'v_lshrrev_b32 {t1}, 5, {lane}'); a(f'v_lshl_add_u32 {t0}, {t1}, 14, {t0}')
                a(f'v_and_b32 {t1}, 15, {lane}'); a(f'v_lshl_add_u32 {t0}, {t1}, 2, {t0}')
                a('s_lshl_b32 s15, s19, 18'); a(f's_lshl_b32 s3, {wq}, 6'); a('s_add_u32 s15, s15, s3'); a('s_lshl_b32 s3, s18, 8'); a('s_add_u32 s15, s15, s3')
                a(f'v_add_u32 {t0}, s15, {t0}')
                for r in range(8):
                    a(f's_mov_b32 s15, {(4*(r >> 1) + (r & 1))*8192}'); a(f'buffer_load_dword {xe[r]}, {t0}, s[36:39], s15 offen sc1'); vq.append('x')
        self.stamp2(7)
        for k in range(16): a(f'ds_write_b128 {lw}, {ACC[4*k:4*k+4]} offset:{1024*k}')
        self.ldsflag_set(L_FL + 48, wq, t2, t3)
        gb = free.pop(0); tmp = free.pop(0)
        a(f'v_bfe_u32 {t0}, {lane}, 4, 1'); a(f'v_lshlrev_b32 {t0}, 3, {t0}'); a(f'v_lshrrev_b32 {t2}, 5, {lane}'); a(f'v_add_u32 {t0}, {t0}, {t2}')
        a(f'v_lshlrev_b32 {t2}, 4, {t0}'); a(f'v_add_u32 {t2}, {L_GB}, {t2}')
        for k in range(4): a(f'ds_read_b128 {gb[4*k:4*k+4]}, {t2} offset:{32*k}')
        a(f'v_and_b32 {t1}, 15, {lane}'); a(f's_lshl_b32 s3, {wq}, 4'); a('s_lshl_b32 s15, s18, 6'); a('s_add_u32 s15, s15, s3')
        a(f'v_add_u32 {t1}, s15, {t1}'); a(f'v_mul_u32_u24 {t1}, 896, {t1}'); a(f'v_lshl_add_u32 {t1}, {t0}, 3, {t1}')
        a('s_lshl_b32 s15, s19, 7'); a(f'v_add_u32 {t1}, s15, {t1}')
        a(f's_lshl_b32 s15, {wq}, 12'); a(f'v_lshl_add_u32 {t2}, {lane}, 4, s15'); a(f'v_add_u32 {t0}, {SLOTS[0]}, {t2}')
        a('s_waitcnt vmcnt(0)')
        X = free.pop(0)
        for r in range(8): a(f'v_lshlrev_b32 {X[2*r]}, 16, {xe[r]}'); a(f'v_and_b32 {X[2*r+1]}, 0xffff0000, {xe[r]}')
        self.ldsflag_wait(L_FL + 48, tmp[0:4], t3)
        self.stamp2(8)
        P = ACC
        for src in range(4):
            base, off = (t2, own[src]) if own[src] < SLOTS[0] else (t0, own[src] - SLOTS[0])
            for k in range(4): a(f'ds_read_b128 {P[16*src+4*k:16*src+4*k+4]}, {base} offset:{off + 1024*k}')
        a('s_waitcnt lgkmcnt(8)')
        for r in range(8): a(f'v_pk_add_f32 {P[2*r:2*r+2]}, {P[2*r:2*r+2]}, {P[16+2*r:18+2*r]}')
        a('s_waitcnt lgkmcnt(0)')
        for r in range(8): a(f'v_pk_add_f32 {P[32+2*r:34+2*r]}, {P[32+2*r:34+2*r]}, {P[48+2*r:50+2*r]}')
        for r in range(8): a(f'v_pk_add_f32 {P[2*r:2*r+2]}, {P[2*r:2*r+2]}, {P[32+2*r:34+2*r]}')
        for r in range(4):
            for c in range(4): a(f'v_fmac_f32 {X[4*r+c]}, {gb[4*r+c]}, {P[4*c+r]}')
        for k in range(8): a(f'v_cvt_pk_bf16_f32 {P[32+k]}, {X[2*k]}, {X[2*k+1]}')
        for r in range(4): a(f'global_store_dwordx2 {t1}, {P[32+2*r:34+2*r]}, s[46:47] offset:{16*r}')
        a('s_cmp_eq_u32 s2, 0'); a('s_cbranch_scc0 L_fin'); a('s_cmp_eq_u32 s6, 4'); a('s_cbranch_scc0 L_fin')
        a(f'v_mov_b32 {t0}, 0'); a(f'v_mov_b32 {t2}, s7'); a('s_mov_b64 exec, 1'); a(f'global_store_dword {t0}, {t2}, s[50:51] sc1'); a('s_mov_b64 exec, -1')

    def finish(self):
        a = self.a
        a('L_fin:')
        if self.diag:
            t0, t1 = self.t[0], self.t[1]
            a(f's_{self.clk} s[98:99]'); a('s_memrealtime s[8:9]'); a('s_waitcnt lgkmcnt(0)')
            a('s_lshl_b32 s3, s2, 3'); a('s_add_u32 s3, s3, s6'); a('s_lshl_b32 s3, s3, 6'); a(f's_add_u32 s3, s3, {WS_TIME}')
            a(f'v_mov_b32 {t0}, s3'); a('s_mov_b64 exec, 1')
            for k in range(12):
                a(f'v_mov_b32 {t1}, s{76+2*k}'); a(f'global_store_dword {t0}, {t1}, s[50:51] offset:{4*k}')
            a(f'v_mov_b32 {t1}, s100'); a(f'global_store_dword {t0}, {t1}, s[50:51] offset:48')
            a(f'v_mov_b32 {t1}, s8'); a(f'global_store_dword {t0}, {t1}, s[50:51] offset:52')
            a('s_mov_b64 exec, -1')
        a('L_end:'); a('s_endpgm')

    def build(self):
        a = self.a
        if self.diag:
            for k in range(12): a(f's_mov_b32 s{76+2*k}, 0')
        self.prologue()
        snap = self.v.snapshot()
        self.g0_kgen()
        self.g0_front()
        self.conv()
        a('L_g0b:')
        a('s_barrier')
        self.gemm1()
        self.v.restore(snap)
        a('L_g1:')
        self.g1_front()
        self.g1_mid()
        self.gemm2()
        self.finish()
        bad = a.check_branches()
        for b in bad: print('HAZARD across branch:', b, file=sys.stderr)
        for b in check_async(a): print('ASYNC:', b, file=sys.stderr)
        hdr = open('cdna_kernels/' + NAME + '.s.ref').read().split('; Override launch')[0]
        out = hdr + f'; @launch grid=(256,1,1) block=(512,1,1) lds={LDS_TOTAL}\n'
        out += f'.amdgcn_target "amdgcn-amd-amdhsa--gfx950"\n.text\n.globl {NAME}_kernel\n.p2align 8\n.type {NAME}_kernel,@function\n{NAME}_kernel:\n'
        out += a.text() + '\nL_code_end:\n'
        out += f'''.section .rodata,"a"
.p2align 6
.amdhsa_kernel {NAME}_kernel
  .amdhsa_next_free_vgpr 256
  .amdhsa_next_free_sgpr 102
  .amdhsa_accum_offset 256
  .amdhsa_group_segment_fixed_size 0
  .amdhsa_kernarg_size 144
  .amdhsa_user_sgpr_count 2
  .amdhsa_user_sgpr_kernarg_segment_ptr 1
  .amdhsa_system_sgpr_workgroup_id_x 1
.end_amdhsa_kernel
'''
        print(f'vgpr max {self.v.max} nops {a.nnops} insts {len(a.ins)}', file=sys.stderr)
        return out

if __name__ == '__main__':
    diag = 2 if '--cyc' in sys.argv else (1 if '--diag' in sys.argv else 0)
    opt = [x[2:] for x in sys.argv[2:] if x.startswith('-o')]
    open(sys.argv[1], 'w').write(Gen(diag=diag, opt=opt).build())
```

```python
import sys, math
from asmlib import Asm, RegAlloc, R, check_async

NAME = 'adaLN_cond__ssm_conv_s4__glu_gated_bilinear__prompt'
WS_EPOCH = 0
WS_STATS = 0x1000
WS_ST2   = 0x8000
WS_MOD   = 0x28000
MODS = 21504
WS_FLAGW = 0x20000
WS_C12   = 0x60000
WS_FLAGH = 0x40000
WS_TIME  = 0xa0000
WS_FLAGX = 0xc0000
WS_X1    = 0x100000
WS_X1S   = 0x2c0000
WS_WP    = 0x480000
WS_WD    = 0x7c0000
WS_HH    = 0x960000
WS_XT    = 0x1080000
WS_END   = 0x1400000
KROW = 2064
L_KP  = 0
L_H   = 16640
L_XR  = 25792
L_EX  = 34048
L_KV  = 110080
KVS   = 3088
SLOT = 29184
SLOTS = [66816, 96000, 125184, 0, 29184]
L_MODV = 154368
L_C12 = 157952
L_GB  = 159744
L_GS  = 155392
L_SS  = 160512
L_FL  = 160768
L_LV  = 161024
L_S2  = 161280
L_CS  = 161536
LDS_TOTAL = 163840
SPIN = 20000
LOG2E = 0x3fb8aa3b
INV2PI = 0x3e22f983
INV448 = 0x3b124925
EPS = 0x3727c5ac

class Gen:
    def __init__(self, diag=0, opt=()):
        self.opt = set(opt)
        self.a = Asm(); self.diag = diag
        self.v = RegAlloc('v', 1, 255); self.s = RegAlloc('s', 64, 75 if diag else 101)
        self.nt = ' nt' if 'nt' in self.opt else ''
        self.clk = 'memtime' if diag == 2 else 'memrealtime'
    def stamp2(self, k):
        if 'late' in self.opt and self.diag: self.a(f's_{self.clk} s[{76+2*k}:{77+2*k}]')
    def stamp3(self, k):
        if 'front' in self.opt and self.diag: self.a(f's_{self.clk} s[{76+2*k}:{77+2*k}]')
    def stamp(self, k):
        if 'front' in self.opt and 5 <= k <= 10: return
        if 'late' in self.opt and 1 <= k <= 8: return
        if self.diag:
            self.a(f's_{self.clk} s[{76+2*k}:{77+2*k}]')
            if k == 0: self.a('s_memrealtime s[100:101]')
    def poll(self, load, check, preissued=False, sleep=2):
        a = self.a; L = a.label('poll'); D = a.label('pdone'); S = a.label('pskip')
        cnt = self.s.alloc('spin')
        a(f's_mov_b32 {cnt}, 0')
        if preissued: a(f's_branch {S}')
        a(f'{L}:')
        load()
        if preissued: a(f'{S}:')
        a('s_waitcnt vmcnt(0)')
        check()
        a(f's_cbranch_vccz {D}')
        a(f's_add_u32 {cnt}, {cnt}, 1')
        a(f's_cmp_lt_u32 {cnt}, {SPIN}')
        a(f's_sleep {sleep}')
        a(f's_cbranch_scc1 {L}')
        a(f'{D}:')
        self.s.free('spin')
    def tagcheck(self, tags):
        a = self.a
        for r in tags: a(f'v_xor_b32 {r}, s7, {r}')
        acc = tags[0]; rest = list(tags[1:])
        while len(rest) >= 2:
            a(f'v_or3_b32 {acc}, {acc}, {rest[0]}, {rest[1]}'); rest = rest[2:]
        if rest: a(f'v_or_b32 {acc}, {acc}, {rest[0]}')
        a(f'v_cmp_ne_u32 vcc, 0, {acc}')
    def ldsflag_set(self, addr, idx_sgpr_expr, va, vb):
        a = self.a
        a(f's_lshl_b32 s3, {idx_sgpr_expr}, 2'); a(f's_add_u32 s3, s3, {addr}'); a(f'v_mov_b32 {va}, s3'); a(f'v_mov_b32 {vb}, 1'); a(f'ds_write_b32 {va}, {vb}')
    def ldsflag_wait(self, addr, tmp4, vaddr):
        a = self.a; L = a.label('lf'); D = a.label('lfd')
        cnt = self.s.alloc('spin')
        a(f's_mov_b32 {cnt}, 0'); a(f'v_mov_b32 {vaddr}, {addr}')
        a(f'{L}:')
        a(f'ds_read_b128 {tmp4}, {vaddr}'); a('s_waitcnt lgkmcnt(0)')
        a(f'v_and_b32 {tmp4[0]}, {tmp4[0]}, {tmp4[1]}'); a(f'v_and_b32 {tmp4[2]}, {tmp4[2]}, {tmp4[3]}'); a(f'v_and_b32 {tmp4[0]}, {tmp4[0]}, {tmp4[2]}')
        a(f'v_cmp_eq_u32 vcc, 0, {tmp4[0]}'); a(f's_cbranch_vccz {D}')
        a(f's_add_u32 {cnt}, {cnt}, 1'); a(f's_cmp_lt_u32 {cnt}, {SPIN*20}'); a(f's_cbranch_scc1 {L}')
        a(f'{D}:')
        self.s.free('spin')
    def ldsflag_wait8(self, addr, tmp8, vaddr):
        a = self.a; L = a.label('lf'); D = a.label('lfd')
        cnt = self.s.alloc('spin')
        a(f's_mov_b32 {cnt}, 0'); a(f'v_mov_b32 {vaddr}, {addr}')
        a(f'{L}:')
        a(f'ds_read_b128 {tmp8[0:4]}, {vaddr}'); a(f'ds_read_b128 {tmp8[4:8]}, {vaddr} offset:16'); a('s_waitcnt lgkmcnt(0)')
        for k in range(1, 8): a(f'v_and_b32 {tmp8[0]}, {tmp8[0]}, {tmp8[k]}')
        a(f'v_cmp_eq_u32 vcc, 0, {tmp8[0]}'); a(f's_cbranch_vccz {D}')
        a(f's_add_u32 {cnt}, {cnt}, 1'); a(f's_cmp_lt_u32 {cnt}, {SPIN*20}'); a(f's_cbranch_scc1 {L}')
        a(f'{D}:')
        self.s.free('spin')
    def cmul(self, O, X, Z, T):
        a = self.a
        a(f'v_pk_mul_f32 {T}, {X}, {Z} op_sel:[0,0] op_sel_hi:[1,0]')
        a(f'v_pk_fma_f32 {O}, {X}, {Z}, {T} op_sel:[1,1,0] op_sel_hi:[0,1,1] neg_lo:[1,0,0]')
    def srd(self, base, ptr, size):
        a = self.a
        a(f's_mov_b32 s{base}, s{ptr}'); a(f's_mov_b32 s{base+1}, s{ptr+1}'); a(f's_mov_b32 s{base+2}, {size}'); a(f's_mov_b32 s{base+3}, 0x20000')
    def wsrd(self, base, off, size):
        a = self.a
        a(f's_add_u32 s{base}, s50, {off}'); a(f's_addc_u32 s{base+1}, s51, 0'); a(f's_mov_b32 s{base+2}, {size}'); a(f's_mov_b32 s{base+3}, 0x20000')
    def rbf(self, r):
        self.a(f'v_cvt_pk_bf16_f32 {r}, {r}, {r}'); self.a(f'v_and_b32 {r}, 0xffff0000, {r}')
    def sd_from(self, S, Q):
        a = self.a
        a(f'v_mul_f32 {S}, 0x{INV448:x}, {S}'); a(f'v_mul_f32 {Q}, 0x{INV448:x}, {Q}')
        a(f'v_fma_f32 {Q}, -{S}, {S}, {Q}'); a(f'v_max_f32 {Q}, 0, {Q}'); self.rbf(Q)
        a(f'v_add_f32 {Q}, 0x{EPS:x}, {Q}'); self.rbf(Q); a(f'v_sqrt_f32 {Q}, {Q}')
    def quadsum_round(self, x, y):
        a = self.a
        for d in ['quad_perm:[1,0,3,2]', 'quad_perm:[2,3,0,1]']:
            a(f'v_add_f32_dpp {x}, {x}, {x} {d} row_mask:0xf bank_mask:0xf'); a(f'v_add_f32_dpp {y}, {y}, {y} {d} row_mask:0xf bank_mask:0xf')
        a(f'v_cvt_pk_bf16_f32 {y}, {x}, {y}'); a(f'v_lshlrev_b32 {x}, 16, {y}'); a(f'v_and_b32 {y}, 0xffff0000, {y}')
    def ifconv(self, L): self.a('s_cmp_lt_u32 s5, 28'); self.a(f's_cbranch_scc0 {L}')

    def prologue(self):
        a = self.a; v = self.v
        a('s_load_dwordx16 s[16:31], s[0:1], 0'); a('s_load_dwordx16 s[32:47], s[0:1], 64'); a('s_load_dwordx4 s[48:51], s[0:1], 128')
        self.stamp(0)
        a('s_cmp_ge_u32 s2, 256'); a('s_cbranch_scc1 L_end')
        a('s_and_b32 s4, s2, 7'); a('s_lshr_b32 s5, s2, 3')
        lane = self.lane = v.alloc('lane'); t0 = v.alloc('t0'); t1 = v.alloc('t1'); t2 = v.alloc('t2'); t3 = v.alloc('t3')
        self.t = [t0, t1, t2, t3]
        a(f'v_lshrrev_b32 {t0}, 6, v0'); a(f'v_and_b32 {lane}, 63, v0'); a(f'v_readfirstlane_b32 s6, {t0}')
        a('s_mul_i32 s10, s4, 28'); a('s_min_u32 s3, s5, 27'); a('s_add_u32 s10, s10, s3')
        a(f'v_mov_b32 {t0}, 0'); a(f'v_lshlrev_b32 {t1}, 2, {lane}'); a(f'v_add_u32 {t1}, {L_FL}, {t1}'); a(f'ds_write_b32 {t1}, {t0}'); a(f'ds_write_b32 {t1}, {t0} offset:256')
        a(f'v_and_b32 v0, 255, v0')
        a('s_cmp_lt_u32 s6, 4'); a('s_cbranch_scc0 L_g1')

    def g0_kgen(self):
        a = self.a; v = self.v; t0, t1, t2, t3 = self.t; lane = self.lane
        par = v.alloc('par', 6)
        a(f'v_and_b32 {t1}, 1, {lane}'); a(f'v_mul_u32_u24 {t1}, {KVS}, {t1}'); a(f'v_add_u32 {t1}, {L_KV}, {t1}'); a(f'ds_write_b32 {t1}, {t0}')
        a('s_lshl_b32 s15, s10, 10'); a(f'v_lshl_add_u32 {t1}, v0, 2, s15'); a('s_lshl_b32 s12, s10, 2')
        a('s_waitcnt lgkmcnt(0)')
        for k in range(6): a(f'global_load_dword {par[k]}, {t1}, s[{18+2*k}:{19+2*k}] nt')
        a('s_load_dword s7, s[50:51], 0')
        a('s_load_dword s13, s[30:31], s12'); a('s_load_dword s14, s[32:33], s12')
        a('s_barrier')
        self.roles_cd()
        a('s_waitcnt lgkmcnt(0)'); a('s_add_u32 s7, s7, 1')
        a('s_cmp_lt_u32 s5, 28'); a('s_cbranch_scc1 L_isconv'); a('s_waitcnt vmcnt(0)'); self.helper_warm(); a('s_branch L_g0b'); a('L_isconv:')
        ex = self.ex = v.alloc('ex', 9)
        kr_src = self.kr_src = v.alloc('kr_src'); kr_dst = self.kr_dst = v.alloc('kr_dst'); kr_st = self.kr_st = v.alloc('kr_st')
        t4 = v.alloc('t4'); t5 = v.alloc('t5'); dt = v.alloc('dt')
        a('s_lshl_b32 s15, s13, 16'); a('s_and_b32 s3, s13, 0xffff0000'); a('s_cmp_lt_u32 s6, 2'); a('s_cselect_b32 s15, s15, s3')
        a(f'v_mov_b32 {t0}, s15'); a(f'v_mul_f32 {t1}, 0x{LOG2E:x}, {t0}')
        a(f's_mov_b32 s3, 0x{LOG2E:x}'); a(f'v_fma_f32 {t2}, {t0}, s3, -{t1}')
        a(f'v_fmac_f32 {t2}, 0x32a57060, {t0}')
        a(f'v_exp_f32 {t1}, {t1}'); a(f'v_mul_f32 {t2}, 0x3f317218, {t2}'); a(f'v_fmac_f32 {t1}, {t1}, {t2}')
        a(f'v_cvt_pk_bf16_f32 {dt}, {t1}, {t1}'); a(f'v_and_b32 {dt}, 0xffff0000, {dt}')
        a(f'v_lshlrev_b32 {t0}, 3, v0'); a(f'v_sub_u32 {t0}, 2047, {t0}')
        a(f'v_cmp_lt_u32 vcc, 256, {t0}'); a(f'v_mov_b32 {t3}, {L_KV+4}')
        for m in range(9):
            a(f'v_subrev_u32 {ex[m]}, {m}, {t0}'); a(f'v_cvt_f32_i32 {t1}, {ex[m]}'); a(f'v_cvt_pk_bf16_f32 {t1}, {t1}, {t1}')
            a(f'v_lshrrev_b32 {t1}, 16, {t1}'); a(f'v_subrev_u32 {t1}, 0x4280, {t1}')
            a(f'v_cndmask_b32 {ex[m]}, {ex[m]}, {t1}, vcc'); a(f'v_lshl_add_u32 {ex[m]}, {ex[m]}, 2, {t3}')
        a(f'v_lshrrev_b32 {t1}, 4, v0'); a(f'v_and_b32 {t2}, 15, v0')
        a(f'v_mul_u32_u24 {kr_src}, {KROW}, {t1}'); a(f'v_lshl_add_u32 {kr_src}, {t2}, 4, {kr_src}')
        a(f'v_and_b32 {t4}, 3, {t1}'); a(f'v_lshrrev_b32 {t1}, 2, {t1}'); a(f'v_lshl_add_u32 {t4}, {t1}, 3, {t4}')
        a(f'v_lshrrev_b32 {t1}, 3, {t2}'); a(f'v_lshl_add_u32 {t4}, {t1}, 2, {t4}')
        a(f'v_and_b32 {t2}, 7, {t2}'); a(f'v_lshlrev_b32 {t2}, 2, {t2}')
        a(f'v_mov_b32 {kr_dst}, {t4}'); a(f'v_mov_b32 {kr_st}, 8')
        a(f'v_cmp_le_u32 vcc, 8, {t4}'); a(f'v_add_u32 {t1}, 248, {t4}')
        a(f'v_cndmask_b32 {kr_dst}, {kr_dst}, {t1}, vcc'); a(f'v_cndmask_b32 {kr_st}, {kr_st}, 4, vcc')
        a(f'v_cmp_le_u32 vcc, 12, {t4}'); a(f'v_and_b32 {t1}, 1, {t4}'); a(f'v_bfe_u32 {t5}, {t4}, 1, 1')
        a(f'v_lshl_add_u32 {t1}, {t5}, 6, {t1}'); a(f'v_add_u32 {t1}, 384, {t1}')
        a(f'v_cndmask_b32 {kr_dst}, {kr_dst}, {t1}, vcc'); a(f'v_cndmask_b32 {kr_st}, {kr_st}, 2, vcc')
        a(f'v_cmp_le_u32 vcc, 16, {t4}'); a(f'v_lshlrev_b32 {t1}, 5, {t4}')
        a(f'v_cndmask_b32 {kr_dst}, {kr_dst}, {t1}, vcc'); a(f'v_cndmask_b32 {kr_st}, {kr_st}, 1, vcc')
        a(f'v_mad_u32_u24 {kr_dst}, {kr_st}, {t2}, {kr_dst}')
        a(f'v_lshl_add_u32 {kr_dst}, {kr_dst}, 2, {t3}'); a(f'v_lshlrev_b32 {kr_st}, 2, {kr_st}')
        v.free('t4', 't5')
        snap = v.snapshot()
        P = [v.alloc(f'p{k}', 2) for k in range(6)]
        S = [{n: v.alloc(f'{n}_{q}', 2) for n in ('k', 'z1', 'z2', 'z4', 'z8', 'zb', 'T', 'T2', 'U', 'U2', 'V')} for q in range(2)]
        e = v.alloc('e', 8, 2); dd = v.alloc('dd', 2); pk = v.alloc('pk', 8)
        a(f'v_mov_b32 {dd[0]}, {dt}'); a(f'v_mov_b32 {dd[1]}, {dt}')
        a('s_lshl_b32 s15, s6, 9'); a('s_mov_b32 m0, s15')
        a('s_waitcnt vmcnt(0)')
        self.stamp(1)
        for k in range(6):
            a(f'v_lshlrev_b32 {P[k][0]}, 16, {par[k]}'); a(f'v_and_b32 {P[k][1]}, 0xffff0000, {par[k]}')
        ar, ai, br, bi, cr, ci = P
        for x in (ar, ai, br, bi): a(f'v_pk_mul_f32 {x}, {x}, {dd}')
        for q in range(2): a(f'v_mul_f32 {ar[q]}, 0x{LOG2E:x}, {ar[q]}'); a(f'v_mul_f32 {ai[q]}, 0x{INV2PI:x}, {ai[q]}')
        for q in range(2):
            a(f'v_exp_f32 {e[q]}, {ar[q]}'); a(f'v_fract_f32 {e[2+q]}, {ai[q]}')
            a(f'v_mul_f32 {e[4+q]}, 0x43800000, {ar[q]}'); a(f'v_mul_f32 {e[6+q]}, 0x43800000, {ai[q]}')
        for q in range(2):
            a(f'v_cos_f32 {S[q]["z1"][0]}, {e[2+q]}'); a(f'v_sin_f32 {S[q]["z1"][1]}, {e[2+q]}')
            a(f'v_exp_f32 {e[4+q]}, {e[4+q]}'); a(f'v_fract_f32 {e[6+q]}, {e[6+q]}')
        for q in range(2):
            k = S[q]['k']
            a(f'v_mul_f32 {k[0]}, {cr[q]}, {br[q]}'); a(f'v_mul_f32 {k[1]}, {cr[q]}, {bi[q]}')
            a(f'v_mul_f32 {S[q]["z1"][0]}, {e[q]}, {S[q]["z1"][0]}'); a(f'v_mul_f32 {S[q]["z1"][1]}, {e[q]}, {S[q]["z1"][1]}')
            a(f'v_cos_f32 {S[q]["zb"][0]}, {e[6+q]}'); a(f'v_sin_f32 {S[q]["zb"][1]}, {e[6+q]}')
            a(f'v_fma_f32 {k[0]}, -{ci[q]}, {bi[q]}, {k[0]}'); a(f'v_fmac_f32 {k[1]}, {ci[q]}, {br[q]}')
        def cm(O, X, Z, T):
            for q in range(2): a(f'v_pk_mul_f32 {S[q][T]}, {S[q][X]}, {S[q][Z]} op_sel:[0,0] op_sel_hi:[1,0]')
            for q in range(2): a(f'v_pk_fma_f32 {S[q][O]}, {S[q][X]}, {S[q][Z]}, {S[q][T]} op_sel:[1,1,0] op_sel_hi:[0,1,1] neg_lo:[1,0,0]')
        st = {'n': 0, 'hi': False}
        def put(row, X, neg):
            ps = []
            for q in range(2):
                p = pk[st['n'] % 8]; st['n'] += 1; ps.append(p)
                a(f'v_cvt_pk_bf16_f32 {p}, {S[q][X][0]}, {"-" if neg else ""}{S[q][X][1]}')
            if row >= 30 and not st['hi']:
                a(f's_add_u32 m0, s15, {30*KROW}'); st['hi'] = True
            assert (row >= 30) == st['hi']
            for q in range(2): a(f'ds_write_addtid_b32 {ps[q]} offset:{(row - (30 if row >= 30 else 0))*KROW + 256*q}')
        cm('z2', 'z1', 'z1', 'T')
        for q in range(2): a(f'v_mul_f32 {S[q]["zb"][0]}, {e[4+q]}, {S[q]["zb"][0]}'); a(f'v_mul_f32 {S[q]["zb"][1]}, {e[4+q]}, {S[q]["zb"][1]}')
        put(0, 'k', True)
        cm('z4', 'z2', 'z2', 'T'); cm('U', 'k', 'z1', 'T2'); cm('z8', 'z4', 'z4', 'T'); put(1, 'U', True)
        a(f'v_mov_b32 {t0}, 0x3f80'); a(f'ds_write_addtid_b32 {t0} offset:{21*KROW}'); a(f'ds_write_addtid_b32 {t0} offset:{21*KROW+256}')
        put(22, 'z8', False)
        coarse = [(i, 'U', 'U', 'z1') for i in range(2, 8)]
        coarse += [(8, 'U', 'k', 'zb'), (12, 'U2', 'U', 'zb'), (9, 'U', 'U', 'z2'), (10, 'U', 'U', 'z2'), (11, 'U', 'U', 'z2'), (13, 'U', 'U2', 'z4'), (15, 'U', 'U', 'zb'),
                   (14, 'U2', 'U2', 'zb'), (16, 'U2', 'U2', 'zb'), (17, 'U2', 'U2', 'zb'), (18, 'U2', 'U2', 'zb'), (19, 'U2', 'U2', 'zb'), (20, 'U2', 'U2', 'zb')]
        pend = None
        j = 2
        for (row, O, X, Z) in coarse:
            cm(O, X, Z, 'T')
            if j <= 8: cm('V', 'z8' if j == 2 else 'V', 'z8', 'T2')
            put(row, O, True)
            if j <= 8: put(21 + j, 'V', False); j += 1
        for j in range(9, 32):
            cm('V', 'V', 'z8', 'T'); put(21 + j, 'V', False)
        self.stamp3(2)
        v.restore(snap); v.free('dt', 'par')
        fa = v.alloc('fa', 64, 4); fb = v.alloc('fb', 64, 4); acc = v.alloc('kacc', 16, 4)
        a(f'v_and_b32 {t0}, 31, {lane}'); a(f'v_mul_u32_u24 {t0}, {KROW}, {t0}'); a(f'v_lshrrev_b32 {t1}, 5, {lane}')
        a(f'v_lshlrev_b32 {t1}, 4, {t1}'); a(f'v_add3_u32 {t0}, {t0}, {t1}, s15')
        rd = lambda ks: (a(f'ds_read_b128 {fa[4*ks:4*ks+4]}, {t0} offset:{32*ks}'), a(f'ds_read_b128 {fb[4*ks:4*ks+4]}, {t0} offset:{21*KROW+32*ks}'))
        for ks in range(6): rd(ks)
        for ks in range(16):
            a(f's_waitcnt lgkmcnt({2*min(5, 15-ks)})')
            a(f'v_mfma_f32_32x32x16_bf16 {acc}, {fa[4*ks:4*ks+4]}, {fb[4*ks:4*ks+4]}, {acc if ks else 0}')
            if ks + 6 < 16: rd(ks + 6)
        a('s_mov_b32 m0, s15')
        self.p4addr()
        for r in range(12): a(f'ds_write_addtid_b32 {acc[r]} offset:{r*KROW}')
        v.free('fa', 'fb', 'kacc')
        self.stamp(3)

    def g1_front(self):
        a = self.a; v = self.v; t0, t1, t2, t3 = self.t; lane = self.lane
        wd = self.wrow = v.alloc('wd', 16)
        snap = v.snapshot()
        dummy = v.alloc('dummy', 4)
        a('s_mul_i32 s11, s4, 21'); a('s_add_u32 s11, s11, s5')
        a('s_cmp_ge_u32 s6, 6'); a('s_cbranch_scc0 L_nopf')
        a('s_getpc_b64 s[8:9]'); a('L_pc:')
        a(f's_sub_u32 s8, s8, L_pc-{NAME}_kernel'); a('s_subb_u32 s9, s9, 0')
        a('s_sub_u32 s15, s6, 6'); a('s_lshl_b32 s15, s15, 5'); a('s_add_u32 s15, s15, s5'); a('s_lshl_b32 s15, s15, 10'); a(f'v_lshl_add_u32 {t0}, {lane}, 4, s15')
        a(f'v_min_u32 {t0}, L_code_end-{NAME}_kernel-16, {t0}')
        a(f'global_load_dwordx4 {dummy}, {t0}, s[8:9]')
        a('L_nopf:')
        cs = v.alloc('cs', 4); wm = v.alloc('wm', 16, 4); row = v.alloc('row', 8, 4); xp = v.alloc('xp', 16, 4)
        ga0 = v.alloc('ga0'); ga1 = v.alloc('ga1'); xa0 = v.alloc('xa0'); xa1 = v.alloc('xa1'); wa = v.alloc('wa')
        for k in range(4): a(f'v_mov_b32 {cs[k]}, 0')
        for k in range(8): a(f'v_mov_b32 {row[k]}, 0')
        a('s_and_b32 s3, s11, 3'); a('s_mul_i32 s3, s3, 112'); a(f'v_lshrrev_b32 {ga0}, 3, v0'); a(f'v_add_u32 {ga0}, s3, {ga0}'); a(f'v_lshlrev_b32 {ga1}, 1, {ga0}')
        a(f'v_mul_u32_u24 {ga0}, 5376, {ga0}'); a(f'v_and_b32 {t2}, 7, v0'); a(f'v_lshlrev_b32 {t2}, 4, {t2}')
        a('s_lshr_b32 s15, s11, 2'); a('s_lshl_b32 s15, s15, 7'); a(f'v_add3_u32 {ga0}, {ga0}, {t2}, s15')
        a(f'v_and_b32 {t2}, 3, v0'); a(f'v_mul_u32_u24 {xa0}, 1792, {t2}'); a(f'v_and_b32 {t0}, 252, v0'); a('s_mul_i32 s3, s2, 7168'); a(f'v_add3_u32 {xa0}, {xa0}, {t0}, s3')
        a('s_lshl_b32 s15, s6, 1'); a('s_sub_u32 s15, s15, 8'); a('s_mul_i32 s15, s15, 896'); a('s_add_u32 s3, s3, s15'); a(f'v_lshl_add_u32 {t3}, {lane}, 4, s3')
        a('s_cmp_lt_u32 s6, 6'); a('s_movk_i32 s15, 512'); a('s_cselect_b32 s15, 768, s15'); a(f'v_add_u32 {xa1}, s15, {xa0}'); a('s_cselect_b32 s9, 0, 0x40000000')
        a('s_cmp_lt_u32 s5, 21'); a('s_cselect_b32 s8, 0, 0x40000000'); a('s_or_b32 s9, s9, s8')
        a('s_and_b32 s3, s10, 3'); a(f's_mul_i32 s3, s3, {112*3584}'); a('s_lshr_b32 s15, s10, 3'); a('s_lshl_b32 s15, s15, 7'); a('s_add_u32 s15, s15, s3')
        a(f'v_lshrrev_b32 {wa}, 4, v0'); a(f'v_min_u32 {wa}, 13, {wa}'); a(f'v_mul_u32_u24 {wa}, {8*3584}, {wa}')
        a(f'v_and_b32 {t1}, 15, v0'); a(f'v_lshlrev_b32 {t1}, 3, {t1}'); a(f'v_add3_u32 {wa}, {wa}, {t1}, s15')
        a('s_waitcnt lgkmcnt(0)')
        self.srd(52, 44, 448*5376); self.srd(56, 42, 896)
        for i in range(4):
            a(f's_add_u32 s3, {"s8" if i < 3 else "s9"}, {32*5376*i}'); a(f'buffer_load_dwordx4 {wm[4*i:4*i+4]}, {ga0}, s[52:55], s3 offen nt')
        for i in range(4): a(f'buffer_load_short_d16_hi {cs[i]}, {ga1}, s[56:59], {"s8" if i < 3 else "s9"} offen offset:{64*i}')
        for u in range(4):
            ad, o = (xa0, 256*u) if u < 3 else (xa1, 0)
            a(f'global_load_dword {xp[4*u]}, {ad}, s[16:17] offset:{o} nt'); a(f'global_load_dword {xp[4*u+2]}, {ad}, s[16:17] offset:{o+896} nt')
        a('s_mov_b32 exec_hi, 0x00ffffff'); a(f'global_load_dwordx4 {row[0:4]}, {t3}, s[16:17] nt'); a(f'global_load_dwordx4 {row[4:8]}, {t3}, s[16:17] offset:896 nt'); a('s_mov_b32 exec_hi, -1')
        a('s_load_dword s7, s[50:51], 0')
        a('s_barrier')
        a('s_bitcmp1_b32 s10, 2'); a('s_cselect_b32 s60, s38, s36'); a('s_cselect_b32 s61, s39, s37')
        a(f's_mov_b32 s62, {448*3584}'); a('s_mov_b32 s63, 0x20000')
        tt = v.alloc('tt', 8, 4); acc = v.alloc('gacc', 8, 4); gs = v.alloc('gs')
        a('s_mul_i32 s3, s2, 14336'); a(f's_add_u32 s3, s3, {WS_XT}'); a(f'v_lshl_add_u32 {tt[0]}, v0, 4, s3')
        a(f'v_add_u32 {tt[1]}, 4096, {tt[0]}'); a(f'v_add_u32 {tt[2]}, 8192, {tt[0]}')
        a('s_cmp_lt_u32 s6, 6'); a('s_movk_i32 s3, 8192'); a('s_cselect_b32 s3, 12288, s3'); a(f'v_add_u32 {tt[3]}, s3, {tt[0]}')
        a(f'v_and_b32 {gs}, 7, {lane}'); a(f'v_lshlrev_b32 {gs}, 5, {gs}'); a(f'v_lshrrev_b32 {t1}, 5, {lane}'); a(f'v_lshl_add_u32 {gs}, {t1}, 4, {gs}')
        a(f'v_bfe_u32 {t1}, {lane}, 4, 1'); a(f'v_lshl_add_u32 {gs}, {t1}, 3, {gs}')
        a(f's_lshl_b32 s3, s6, 8'); a(f's_add_u32 s3, s3, {L_GS - 1024}'); a(f'v_add_u32 {gs}, s3, {gs}')
        a('s_waitcnt lgkmcnt(0)'); a('s_add_u32 s7, s7, 1')
        for k in range(8): a(f'v_mov_b32 {xp[2*k+1]}, s7')
        a('s_setprio 2')
        a('s_waitcnt vmcnt(10)')
        self.stamp(1)
        a('s_cmp_lt_u32 s5, 21'); a('s_cbranch_scc0 L_nog1')
        sl = [t0, t1, t2, t3]
        for i in range(4): a(f'v_mul_f32 {sl[i]}, 0xbfb8aa3b, {cs[i]}')
        for i in range(4): a(f'v_exp_f32 {sl[i]}, {sl[i]}')
        for i in range(4): a(f'v_add_f32 {sl[i]}, 1.0, {sl[i]}')
        for i in range(4): a(f'v_rcp_f32 {sl[i]}, {sl[i]}')
        for k in range(4):
            a(f'v_lshlrev_b32 {acc[2*k]}, 16, {wm[k]}'); a(f'v_and_b32 {acc[2*k+1]}, 0xffff0000, {wm[k]}')
        for i in range(4): a(f'v_mul_f32 {sl[i]}, {sl[i]}, {cs[i]}')
        for i in (0, 2):
            a(f'v_cvt_pk_bf16_f32 {sl[i]}, {sl[i]}, {sl[i+1]}'); a(f'v_lshlrev_b32 {cs[i]}, 16, {sl[i]}'); a(f'v_and_b32 {cs[i+1]}, 0xffff0000, {sl[i]}')
        for k in range(4): a(f'v_pk_mul_f32 {acc[2*k:2*k+2]}, {acc[2*k:2*k+2]}, {cs[0:2]} op_sel:[0,0] op_sel_hi:[1,0]')
        for i in range(1, 4):
            for k in range(4):
                w_ = wm[4*i+k]; pr = R('v', sl[2*(k & 1)].i, 2)
                a(f'v_lshlrev_b32 {pr[0]}, 16, {w_}'); a(f'v_and_b32 {pr[1]}, 0xffff0000, {w_}')
                h = i & 1
                a(f'v_pk_fma_f32 {acc[2*k:2*k+2]}, {pr}, {cs[2*(i>>1):2*(i>>1)+2]}, {acc[2*k:2*k+2]} op_sel:[0,{h},0] op_sel_hi:[1,{h},1]')
        for k in range(4): a(f'v_permlane32_swap_b32 {acc[k]}, {acc[4+k]}')
        for k in range(4): a(f'v_add_f32 {acc[k]}, {acc[k]}, {acc[4+k]}')
        for k in range(2): a(f'v_permlane16_swap_b32 {acc[k]}, {acc[2+k]}')
        for k in range(2): a(f'v_add_f32 {acc[k]}, {acc[k]}, {acc[2+k]}')
        for k in range(2): a(f'v_add_f32_dpp {acc[k]}, {acc[k]}, {acc[k]} row_ror:8 row_mask:0xf bank_mask:0xf')
        a(f'ds_write_b64 {gs}, {acc[0:2]}')
        a('L_nog1:')
        a('s_waitcnt vmcnt(0)')
        self.stamp(2)
        for u in range(4): a(f'global_store_dwordx4 {tt[u]}, {xp[4*u:4*u+4]}, s[50:51] sc1')
        st = acc
        for k in range(4): a(f'v_mov_b32 {st[k]}, 0')
        for k in range(4):
            for r in range(2): a(f'v_dot2c_f32_bf16 {st[2*r]}, 0x3f803f80, {row[4*r+k]}'); a(f'v_dot2c_f32_bf16 {st[2*r+1]}, {row[4*r+k]}, {row[4*r+k]}')
        for d in ['row_shr:1 row_mask:0xf', 'row_shr:2 row_mask:0xf', 'row_shr:4 row_mask:0xf', 'row_shr:8 row_mask:0xf', 'row_bcast:15 row_mask:0xa', 'row_bcast:31 row_mask:0xc']:
            for k in range(4): a(f'v_add_f32_dpp {st[k]}, {st[k]}, {st[k]} {d} bank_mask:0xf')
        self.sd_from(st[0], st[1]); self.sd_from(st[2], st[3])
        a(f's_lshl_b32 s3, s6, 3'); a(f's_add_u32 s3, s3, {L_SS - 32}'); a(f'v_mov_b32 {t0}, s3')
        a(f'v_cvt_pk_bf16_f32 {st[0]}, {st[0]}, {st[1]}'); a(f'v_cvt_pk_bf16_f32 {st[1]}, {st[2]}, {st[3]}')
        a('s_mov_b32 exec_lo, 0'); a('s_mov_b32 exec_hi, 0x80000000'); a(f'ds_write_b64 {t0}, {st[0:2]}'); a('s_mov_b64 exec, -1')
        a('s_sub_u32 s15, s6, 4'); self.ldsflag_set(L_FL + 64, 's15', t0, t1)
        g = wm
        a('s_cmp_lt_u32 s6, 6'); a('s_cbranch_scc0 L_nofin')
        self.ldsflag_wait(L_FL + 64, g[0:4], t0)
        a('s_cmp_eq_u32 s6, 5'); a('s_cbranch_scc1 L_stfin')
        a('s_cmp_lt_u32 s5, 21'); a('s_cbranch_scc0 L_nofin')
        a(f'v_lshlrev_b32 {t0}, 2, {lane}'); a(f'v_add_u32 {t0}, {L_GS}, {t0}')
        for w in range(4): a(f'ds_read_b32 {g[2*w]}, {t0} offset:{256*w}')
        a('s_and_b32 s3, s11, 3'); a(f's_mul_i32 s3, s3, {MODS}'); a('s_lshr_b32 s15, s11, 2'); a('s_lshl_b32 s15, s15, 9'); a('s_add_u32 s3, s3, s15')
        a(f's_add_u32 s3, s3, {WS_MOD}'); a(f'v_lshl_add_u32 {t0}, {lane}, 3, s3'); a(f'v_mov_b32 {g[1]}, s7')
        a('s_waitcnt lgkmcnt(0)')
        a(f'v_add_f32 {g[0]}, {g[0]}, {g[2]}'); a(f'v_add_f32 {g[4]}, {g[4]}, {g[6]}'); a(f'v_add_f32 {g[0]}, {g[0]}, {g[4]}')
        a(f'global_store_dwordx2 {t0}, {g[0:2]}, s[50:51] sc1')
        a('s_branch L_nofin')
        a('L_stfin:')
        a(f'v_lshlrev_b32 {t0}, 2, {lane}'); a(f'v_add_u32 {t0}, {L_SS}, {t0}'); a('s_mov_b64 exec, 0xff')
        a(f'ds_read_b32 {g[0]}, {t0}'); a(f'v_mov_b32 {g[1]}, s7'); a('s_lshl_b32 s3, s2, 6'); a(f's_add_u32 s3, s3, {WS_STATS}')
        a(f'v_lshl_add_u32 {t0}, {lane}, 3, s3'); a('s_waitcnt lgkmcnt(0)')
        a(f'global_store_dwordx2 {t0}, {g[0:2]}, s[50:51] sc1'); a('s_mov_b64 exec, -1')
        a('L_nofin:')
        a('s_setprio 0')
        self.stamp(3)
        self.ifconv('L_norp')
        for i in range(8):
            if i: a(f's_mov_b32 s3, {3584*i}')
            a(f'buffer_load_dwordx2 {wd[2*i:2*i+2]}, {wa}, s[60:63], {"s3" if i else "0"} offen nt')
        o = v.alloc('wo', 16, 4)
        a('s_mov_b32 s8, 0x05040100'); a('s_mov_b32 s9, 0x07060302')
        a('s_lshr_b32 s3, s10, 3'); a(f's_mul_i32 s3, s3, {4*SLOT}'); a('s_bfe_u32 s15, s10, 0x10002'); a('s_mul_i32 s15, s15, 14592'); a('s_add_u32 s3, s3, s15')
        a('s_and_b32 s15, s10, 3'); a('s_mul_i32 s15, s15, 896'); a('s_add_u32 s3, s3, s15'); a(f's_add_u32 s3, s3, {WS_WP}')
        a(f'v_bfe_u32 {t2}, v0, 2, 2'); a(f'v_mul_u32_u24 {t2}, {SLOT}, {t2}'); a(f'v_lshrrev_b32 {t3}, 4, v0'); a(f'v_lshl_add_u32 {t2}, {t3}, 6, {t2}')
        a(f'v_cmp_gt_u32 vcc, 14, {t3}'); a(f'v_and_b32 {t3}, 3, v0'); a(f'v_lshlrev_b32 {t3}, 4, {t3}'); a(f'v_add3_u32 {t2}, {t2}, {t3}, s3'); a(f'v_add_u32 {t3}, {2*3648}, {t2}')
        a('s_waitcnt vmcnt(0)')
        self.stamp3(5)
        for c in range(4):
            for m in range(4): a(f'v_perm_b32 {o[4*c+m]}, {wd[4*m+2+(c>>1)]}, {wd[4*m+(c>>1)]}, {"s9" if c & 1 else "s8"}')
        a('s_mov_b64 s[8:9], vcc')
        a('s_mov_b64 exec, s[8:9]')
        for c in range(4): a(f'global_store_dwordx4 {t2 if c < 2 else t3}, {o[4*c:4*c+4]}, s[50:51] offset:{3648*(c&1)} sc1')
        a('s_mov_b64 exec, -1')
        a('L_norp:')
        self.stamp3(6)
        self.roles_cd()
        v.restore(snap)

    def sync4(self, addr, idx, tmp4, va, vb):
        self.ldsflag_set(addr, idx, va, vb); self.ldsflag_wait(addr, tmp4, va)

    def p4addr(self):
        a = self.a; v = self.v; t0, t1, t2, t3 = self.t; lane = self.lane
        xt = self.xt = v.alloc('xt', 16, 4); sg = self.sg = v.alloc('sg', 16, 4); ms = self.ms = v.alloc('ms', 4, 4)
        xa = self.xa = v.alloc('xa', 4); sa_ = self.sa_ = v.alloc('sa_', 4); ma = self.ma = v.alloc('ma')
        a(f'v_lshrrev_b32 {t0}, 2, v0'); a(f'v_mul_u32_u24 {xa[0]}, 14336, {t0}'); a(f'v_and_b32 {t0}, 3, v0'); a(f'v_lshl_add_u32 {xa[0]}, {t0}, 4, {xa[0]}')
        a('s_lshl_b32 s3, s10, 6'); a(f's_add_u32 s3, s3, {WS_XT}'); a(f'v_add_u32 {xa[0]}, s3, {xa[0]}')
        a(f'v_lshlrev_b32 {sa_[0]}, 4, v0'); a(f'v_add_u32 {sa_[0]}, {WS_STATS}, {sa_[0]}')
        for u in range(1, 4): a(f'v_add_u32 {xa[u]}, {64*14336*u}, {xa[0]}'); a(f'v_add_u32 {sa_[u]}, {4096*u}, {sa_[0]}')
        a(f'v_bfe_u32 {t0}, {lane}, 2, 2'); a(f'v_bfe_u32 {t1}, {lane}, 3, 1'); a(f'v_and_b32 {t1}, {t1}, {t0}'); a(f'v_add_u32 {t0}, {t0}, {t1}'); a(f'v_mul_u32_u24 {t0}, 3584, {t0}')
        a(f'v_and_b32 {t1}, 3, {lane}'); a(f'v_mul_u32_u24 {t1}, {MODS}, {t1}')
        a('s_lshl_b32 s3, s10, 4'); a(f's_add_u32 s3, s3, {WS_MOD}'); a(f'v_add3_u32 {ma}, {t0}, {t1}, s3')

    def g0_front(self):
        a = self.a; v = self.v; t0, t1, t2, t3 = self.t; lane = self.lane; ex = self.ex
        xt, sg, ms = self.xt, self.sg, self.ms
        p = v.alloc('kp', 32, 4)
        a(f'v_add_u32 {t1}, {self.kr_dst}, {self.kr_st}'); a(f'v_add_u32 {t2}, {t1}, {self.kr_st}'); a(f'v_add_u32 {t3}, {t2}, {self.kr_st}')
        self.ldsflag_set(L_FL + 160, 's6', t0, p[0])
        self.stamp3(5)
        self.ldsflag_wait(L_FL + 160, p[0:4], t0)
        self.stamp3(6)
        a('s_cmp_lt_u32 s6, 3'); a('s_cbranch_scc0 L_nokr')
        for w in range(4): a(f'ds_read_b128 {p[4*w:4*w+4]}, {self.kr_src} offset:{512*w}')
        for ch in range(2):
            a(f's_waitcnt lgkmcnt({2 if ch == 0 else 4})')
            for e, ad in enumerate([self.kr_dst, t1, t2, t3]):
                a(f'v_add_f32 {p[8*ch+e]}, {p[8*ch+e]}, {p[8*ch+4+e]}'); a(f'ds_write_b32 {ad}, {p[8*ch+e]} offset:{KVS*ch}')
        a('L_nokr:')
        self.stamp3(7)
        self.ldsflag_set(L_FL + 192, 's6', t0, t1)
        self.p4loads()
        self.ldsflag_wait(L_FL + 192, p[0:4], t0)
        self.stamp(4)
        kv = p
        for ch in range(2):
            for m in range(9): a(f'ds_read_b32 {kv[9*ch+m]}, {ex[m]} offset:{KVS*ch}')
        o = v.alloc('eo', 16, 4)
        a(f'v_mov_b32 {t2}, 0'); a(f'v_mov_b32 {t3}, 0')
        a('s_cmp_eq_u32 s6, 3'); a('s_cbranch_scc0 L_nz1')
        a(f'v_lshrrev_b32 {t1}, 2, {lane}'); a(f'v_and_b32 {t1}, 3, {t1}'); a(f'v_mul_u32_u24 {t1}, 4160, {t1}')
        a(f'v_and_b32 {o[0]}, 3, {lane}'); a(f'v_lshl_add_u32 {t1}, {o[0]}, 3, {t1}')
        a(f'ds_write_b64 {t1}, {R("v", t2.i, 2)} offset:{L_KP+4096}')
        a(f'v_min_u32 {t1}, 59, {lane}'); a(f'v_lshlrev_b32 {t1}, 3, {t1}')
        a(f'ds_write_b64 {t1}, {R("v", t2.i, 2)} offset:{L_H}'); a(f'ds_write_b64 {t1}, {R("v", t2.i, 2)} offset:{L_H+4576}')
        a('L_nz1:')
        a(f'v_lshlrev_b32 {t1}, 4, v0')
        a('s_waitcnt lgkmcnt(0)')
        for ch in range(2):
            for m in range(4):
                a(f'v_cvt_pk_bf16_f32 {o[8*ch+m]}, {kv[9*ch+2*m]}, {kv[9*ch+2*m+1]}'); a(f'v_cvt_pk_bf16_f32 {o[8*ch+4+m]}, {kv[9*ch+2*m+1]}, {kv[9*ch+2*m+2]}')
            a(f'ds_write_b128 {t1}, {o[8*ch:8*ch+4]} offset:{L_KP+8320*ch}'); a(f'ds_write_b128 {t1}, {o[8*ch+4:8*ch+8]} offset:{L_KP+8320*ch+4160}')
        self.stamp3(8)
        self.poll(self.p4loads, lambda: self.tagcheck([xt[2*i+1] for i in range(8)] + [sg[2*i+1] for i in range(8)] + [ms[1], ms[3]]), preissued=True, sleep=1)
        self.stamp(5); self.stamp3(9)
        self.ldsflag_set(L_FL + 144, 's6', t0, t1)
        h = p
        self.quadsum_round(ms[0], ms[2])
        a(f'v_add_f32 {ms[1]}, 1.0, {ms[0]}'); a(f'v_add_f32 {ms[3]}, 1.0, {ms[2]}'); self.rbf(ms[1]); self.rbf(ms[3])
        a(f'v_readlane_b32 s8, {ms[0]}, 0'); a(f'v_readlane_b32 s9, {ms[2]}, 0'); a(f'v_readlane_b32 s30, {ms[1]}, 4'); a(f'v_readlane_b32 s31, {ms[3]}, 4')
        a(f'v_readlane_b32 s12, {ms[0]}, 8'); a(f'v_readlane_b32 s13, {ms[2]}, 8'); a(f'v_readlane_b32 s28, {ms[1]}, 12'); a(f'v_readlane_b32 s29, {ms[3]}, 12')
        for i in range(8):
            g = sg[2*i]; mu = sg[2*i+1]
            a(f'v_lshlrev_b32 {mu}, 16, {g}'); a(f'v_and_b32 {g}, 0xffff0000, {g}'); a(f'v_rcp_f32 {g}, {g}')
        a(f'v_mov_b32 {ms[0]}, s30'); a(f'v_mov_b32 {ms[1]}, s31'); a(f'v_mov_b32 {ms[2]}, s8'); a(f'v_mov_b32 {ms[3]}, s9')
        for i in range(8):
            x = xt[2*i]; H = h[2*i:2*i+2]; G = sg[2*i:2*i+2]
            a(f'v_lshlrev_b32 {H[0]}, 16, {x}'); a(f'v_and_b32 {H[1]}, 0xffff0000, {x}')
            a(f'v_pk_add_f32 {H}, {H}, {G} op_sel:[0,1] op_sel_hi:[1,1] neg_lo:[0,1] neg_hi:[0,1]')
            a(f'v_pk_mul_f32 {H}, {H}, {G} op_sel:[0,0] op_sel_hi:[1,0]')
            a(f'v_pk_fma_f32 {H}, {H}, {ms[0:2]}, {ms[2:4]}')
        a(f'v_lshlrev_b32 {t1}, 2, v0'); a(f'v_lshlrev_b32 {t2}, 3, v0')
        for u in range(4):
            a(f'v_cvt_pk_bf16_f32 {h[16+2*u]}, {h[4*u]}, {h[4*u+2]}'); a(f'v_cvt_pk_bf16_f32 {h[17+2*u]}, {h[4*u+1]}, {h[4*u+3]}')
            a(f'ds_write_b32 {t1}, {h[16+2*u]} offset:{L_H+480+1024*u}'); a(f'ds_write_b32 {t1}, {h[17+2*u]} offset:{L_H+4576+480+1024*u}')
            a(f'ds_write2_b32 {t2}, {xt[4*u]}, {xt[4*u+2]} offset0:{0} offset1:{1}' if False else f'v_mov_b32 {xt[4*u+1]}, {xt[4*u+2]}')
            a(f'ds_write_b64 {t2}, {xt[4*u:4*u+2]} offset:{L_XR+2048*u}')
        self.stamp3(10)
        self.sync4(L_FL + 208, 's6', p[24:28], t0, t1)
        self.stamp(6)
        v.free('ex', 'kr_src', 'kr_dst', 'kr_st', 'xt', 'sg', 'ms', 'xa', 'sa_', 'ma', 'kp', 'eo')

    def p4loads(self):
        a = self.a; xt, sg, ms, xa, sa_, ma = self.xt, self.sg, self.ms, self.xa, self.sa_, self.ma
        for u in range(4): a(f'global_load_dwordx4 {xt[4*u:4*u+4]}, {xa[u]}, s[50:51] sc1')
        for u in range(4): a(f'global_load_dwordx4 {sg[4*u:4*u+4]}, {sa_[u]}, s[50:51] sc1')
        a(f'global_load_dwordx4 {ms}, {ma}, s[50:51] sc1')

    def roles_cd(self):
        a = self.a
        a('s_lshr_b32 s16, s4, 2'); a('s_lshl_b32 s16, s16, 3'); a('s_lshr_b32 s3, s5, 2'); a('s_add_u32 s16, s16, s3')
        a('s_and_b32 s17, s4, 3'); a('s_lshl_b32 s17, s17, 2'); a('s_and_b32 s3, s5, 3'); a('s_add_u32 s17, s17, s3')
        a('s_mul_i32 s3, s5, 37'); a('s_lshr_b32 s3, s3, 8'); a('s_lshl_b32 s18, s4, 2'); a('s_add_u32 s18, s18, s3')
        a('s_mul_i32 s3, s3, 7'); a('s_sub_u32 s19, s5, s3')
        self.wsrd(52, WS_X1S, 224*8192); self.wsrd(36, WS_X1, 224*8192)
        a(f's_mul_i32 s3, s17, {7*SLOT}'); a(f's_add_u32 s3, s3, {WS_WP}')
        a('s_add_u32 s56, s50, s3'); a('s_addc_u32 s57, s51, 0'); a(f's_mov_b32 s58, {7*SLOT}'); a('s_mov_b32 s59, 0x20000')
        self.srd(20, 40, 1792*896); self.wsrd(24, WS_HH, 64*112*1024)

    def conv(self):
        a = self.a; v = self.v; t0, t1, t2, t3 = self.t; lane = self.lane
        snap = v.snapshot()
        if 'prio' in self.opt: a('s_setprio 2')
        acc = v.alloc('cacc', 32, 4); FA = [v.alloc('fa0', 32, 4), v.alloc('fa1', 32, 4)]; FB = [v.alloc('fb0', 32, 4), v.alloc('fb1', 32, 4)]
        aa = v.alloc('aaddr', 4); ba = v.alloc('baddr')
        a('s_lshr_b32 s15, s6, 1'); a('s_and_b32 s3, s6, 1')
        a(f'v_and_b32 {t0}, 15, {lane}'); a(f'v_lshrrev_b32 {t1}, 4, {lane}')
        a(f'v_lshrrev_b32 {t2}, 1, {t0}'); a(f'v_lshlrev_b32 {t3}, 2, {t1}'); a(f'v_sub_u32 {t2}, {t3}, {t2}'); a(f'v_lshlrev_b32 {t2}, 2, {t2}')
        a(f'v_and_b32 {t3}, 1, {t0}'); a(f'v_mul_u32_u24 {t3}, 4160, {t3}'); a(f'v_sub_u32 {t2}, {t2}, {t3}')
        a('s_mul_i32 s8, s15, 8320'); a('s_lshl_b32 s9, s3, 8'); a('s_sub_u32 s8, s8, s9')
        a(f's_add_u32 s8, s8, {L_KP + 4160 + (1015 - 128)*4 - 192}')
        a(f'v_add_u32 {aa[0]}, s8, {t2}')
        for i in range(1, 4): a(f'v_subrev_u32 {aa[i]}, {1024*i}, {aa[0]}')
        a(f'v_lshlrev_b32 {t2}, 5, {t0}'); a(f'v_lshl_add_u32 {t2}, {t1}, 4, {t2}')
        a('s_mul_i32 s8, s15, 4576'); a('s_sub_u32 s8, s8, s9'); a(f's_add_u32 s8, s8, {L_H + 448 - 192}')
        a(f'v_add_u32 {ba}, s8, {t2}')
        def lA(it, buf, aidx):
            base = aa[aidx // 2]; off = (128 if aidx % 2 == 0 else 0) + 48 - 16*it
            return [f'ds_read2_b32 {FA[buf][4*aidx:4*aidx+2]}, {base} offset0:{off} offset1:{off+1}',
                    f'ds_read2_b32 {FA[buf][4*aidx+2:4*aidx+4]}, {base} offset0:{off+2} offset1:{off+3}']
        def lB(it, buf, b): return [f'ds_read_b128 {FB[buf][4*b:4*b+4]}, {ba} offset:{512*b + 192 - 64*it}']
        def loads(it, buf):
            out = []
            for i in range(8): out += lA(it, buf, 7 - i) + lB(it, buf, i)
            return out
        for x in loads(0, 0): a(x)
        touched = set()
        DEADLINE = 2 if 'dl2' in self.opt else 3
        for it in range(4):
            buf = it & 1
            nxt = loads(it + 1, buf ^ 1) if it < 3 else []
            n = 0; cnt = 0
            if it == DEADLINE: a(f'v_mov_b32 {t2}, {L_LV}'); a(f'v_mov_b32 {t3}, 1'); a(f'ds_write_b32 {t2}, {t3}')
            for i in range(8):
                aidx = 7 - i
                if it == 0: a(f's_waitcnt lgkmcnt({min(15, 21 - 3*i + n)})')
                elif i == 0: a('s_waitcnt lgkmcnt(0)')
                for b in range(8 - aidx):
                    c = aidx + b
                    a(f'v_mfma_f32_16x16x32_bf16 {acc[4*c:4*c+4]}, {FA[buf][4*aidx:4*aidx+4]}, {FB[buf][4*b:4*b+4]}, {acc[4*c:4*c+4] if c in touched else 0}')
                    touched.add(c); cnt += 1
                    if n < len(nxt) and (it > 0 or cnt > 10): a(nxt[n]); n += 1
            assert n == len(nxt), (it, n)
        v.free('fa0', 'fa1', 'fb0', 'fb1', 'aaddr', 'baddr')
        self.stamp(7)
        xr = v.alloc('xr', 8, 4); hr = v.alloc('hr', 8, 2); y = v.alloc('y', 32, 4); fl = v.alloc('fl', 4, 4); ta = v.alloc('ta', 2); exa = v.alloc('exa')
        a(f'v_lshlrev_b32 {ta[0]}, 4, {t0}'); a(f'v_lshl_add_u32 {ta[0]}, {t1}, 2, {ta[0]}'); a('s_lshl_b32 s8, s6, 9'); a(f'v_add_u32 {ta[0]}, s8, {ta[0]}')
        a(f'v_lshlrev_b32 {t2}, 1, {ta[0]}'); a(f'v_lshlrev_b32 {ta[0]}, 2, {ta[0]}')
        for u in range(2):
            a(f'ds_read_b128 {xr[4*u:4*u+4]}, {ta[0]} offset:{L_XR + 1024*u}')
            a(f'ds_read_b64 {hr[4*u:4*u+2]}, {t2} offset:{L_H + 480 + 512*u}'); a(f'ds_read_b64 {hr[4*u+2:4*u+4]}, {t2} offset:{L_H + 4576 + 480 + 512*u}')
        a(f's_lshl_b32 s8, s6, 13'); a(f'v_lshl_add_u32 {exa}, {lane}, 4, s8')
        for c in range(8): a(f'ds_write_b128 {exa}, {acc[4*c:4*c+4]} offset:{L_EX + 1024*c}')
        self.ldsflag_set(L_FL, 's6', t2, t3)
        a('s_lshl_b32 s8, s14, 16'); a('s_and_b32 s9, s14, 0xffff0000')
        a(f's_lshl_b32 s15, s10, 13'); a(f's_add_u32 s15, s15, {WS_X1}'); a(f'v_add_u32 {ta[0]}, s15, {ta[0]}'); a(f'v_add_u32 {ta[1]}, {WS_X1S - WS_X1}, {ta[0]}')
        a(f's_lshl_b32 s3, s6, 11'); a(f'v_lshl_add_u32 {exa}, {lane}, 4, s3')
        a('s_waitcnt lgkmcnt(9)')
        pre = v.alloc('pre', 16, 4)
        a(f'v_mov_b32 {t2}, s8'); a(f'v_mov_b32 {t3}, s9'); a(f'v_mul_f32 {t2}, s12, {t2}'); a(f'v_mul_f32 {t3}, s13, {t3}')
        for u in range(2):
            for e in range(4):
                p0 = pre[8*u+e]; p1 = pre[8*u+4+e]; hh0 = hr[4*u + e//2]; hh1 = hr[4*u + 2 + e//2]
                a(f'v_lshlrev_b32 {p0}, 16, {xr[4*u+e]}'); a(f'v_and_b32 {p1}, 0xffff0000, {xr[4*u+e]}')
                if e % 2 == 0: a(f'v_lshlrev_b32 {fl[0]}, 16, {hh0}'); a(f'v_lshlrev_b32 {fl[1]}, 16, {hh1}')
                else: a(f'v_and_b32 {fl[0]}, 0xffff0000, {hh0}'); a(f'v_and_b32 {fl[1]}, 0xffff0000, {hh1}')
                a(f'v_fmac_f32 {p0}, {t2}, {fl[0]}'); a(f'v_fmac_f32 {p1}, {t3}, {fl[1]}')
        self.ldsflag_wait(L_FL, fl, t3)
        for u in range(2):
            for w in range(4): a(f'ds_read_b128 {y[16*u+4*w:16*u+4*w+4]}, {exa} offset:{L_EX + 8192*w + 1024*u}')
        for u in range(2):
            a(f's_waitcnt lgkmcnt({4 if u == 0 else 0})')
            Y = y[16*u:16*u+16]; P = pre[8*u:8*u+8]
            for e in range(4):
                a(f'v_add_f32 {Y[e]}, {Y[e]}, {Y[4+e]}'); a(f'v_add_f32 {Y[8+e]}, {Y[8+e]}, {Y[12+e]}')
            for e in range(4):
                a(f'v_fmac_f32 {P[e]}, s12, {Y[e]}'); a(f'v_fmac_f32 {P[4+e]}, s13, {Y[8+e]}')
            for e in range(4): a(f'v_cvt_pk_bf16_f32 {Y[e]}, {P[e]}, {P[4+e]}')
            for e in range(4):
                a(f'v_lshlrev_b32 {P[e]}, 16, {Y[e]}'); a(f'v_and_b32 {P[4+e]}, 0xffff0000, {Y[e]}')
                a(f'v_mul_f32 {P[e]}, s28, {P[e]}'); a(f'v_mul_f32 {P[4+e]}, s29, {P[4+e]}')
            for e in range(4): a(f'v_cvt_pk_bf16_f32 {Y[4+e]}, {P[e]}, {P[4+e]}')
            a(f'global_store_dwordx4 {ta[1]}, {Y[4:8]}, s[50:51] offset:{1024*u} sc1')
            a(f'global_store_dwordx4 {ta[0]}, {Y[0:4]}, s[50:51] offset:{1024*u} sc1')
        if 'prio' in self.opt: a('s_setprio 0')
        self.stamp(8)
        a('s_mul_i32 s3, s6, 224'); a('s_add_u32 s3, s3, s10'); a('s_lshl_b32 s3, s3, 7'); a(f's_add_u32 s3, s3, {WS_FLAGX}')
        a(f'v_mov_b32 {t0}, s3'); a(f'v_mov_b32 {t1}, s7')
        a('s_waitcnt vmcnt(0)'); a('s_mov_b64 exec, 1'); a(f'global_store_dword {t0}, {t1}, s[50:51] sc1'); a('s_mov_b64 exec, -1')
        v.restore(snap)

    def dma(self, slot_lds, tile, ntiles, voff):
        a = self.a
        nb = ntiles * SLOT; n = (nb + 1023) // 1024; per = (n + 3) // 4
        L = a.label('dma')
        a('s_sub_u32 s15, s6, 4'); a('s_lshl_b32 s15, s15, 10')
        for i in range(per):
            a(f's_add_u32 m0, s15, {slot_lds + 4096*i}'); a(f's_add_u32 s3, s15, {tile*SLOT + 4096*i}')
            full = n - 4*i
            if full < 4:
                a(f's_cmp_lt_u32 s6, {4 + full}'); a(f's_cbranch_scc0 {L}')
            if 4*i + 4 > n - 1 and nb % 1024:
                a(f's_cmp_eq_u32 s6, {4 + (n - 1 - 4*i)}'); a('s_cselect_b32 exec_hi, 0, -1')
            a(f'buffer_load_dwordx4 {voff}, s[56:59], s3 offen sc1 lds')
        a(f'{L}:')
        a('s_mov_b32 exec_hi, -1')

    def g1_mid(self):
        a = self.a; v = self.v; t0, t1, t2, t3 = self.t; lane = self.lane
        self.WA = v.at('WA', 128, 128); self.va = va = v.at('va', 127); wq = self.wq = self.s.alloc('wq'); a(f's_sub_u32 {self.wq}, s6, 4')
        snap = v.snapshot()
        dum = v.alloc('dum'); l16 = v.alloc('l16'); a(f'v_lshlrev_b32 {l16}, 4, {lane}')
        a(f'v_lshrrev_b32 {t0}, 5, {lane}'); a(f'v_bfe_u32 {t1}, {lane}, 3, 1'); a(f'v_lshl_add_u32 {t0}, {t1}, 1, {t0}'); a(f'v_mul_u32_u24 {va}, {7*14336}, {t0}')
        a(f'v_bfe_u32 {t0}, {lane}, 4, 1'); a(f'v_mul_u32_u24 {t0}, 896, {t0}')
        a(f'v_and_b32 {t1}, 7, {lane}'); a(f'v_lshlrev_b32 {t1}, 4, {t1}'); a(f'v_add3_u32 {va}, {va}, {t0}, {t1}')
        a('s_lshl_b32 s15, s19, 7'); a(f's_mul_i32 s3, {wq}, {28*14336}'); a('s_add_u32 s15, s15, s3'); a(f'v_add_u32 {va}, s15, {va}')
        self.NPRE = 8
        tmp = v.alloc('ptmp', 4, 4); w = self.wrow; WA = self.WA
        rs0 = v.at('rs0', 92, 32)
        raw = lambda lv: rs0 if lv == 3 else WA[32*(lv+1):32*(lv+1)+32]
        a('s_setprio 2')
        self.ifconv('L_noc')
        mg = v.alloc('mg', 16, 4); f = v.alloc('wf', 32, 4); c12 = v.alloc('c12', 8, 4)
        a(f'v_lshrrev_b32 {t0}, 2, v0'); a(f'v_min_u32 {t0}, 55, {t0}'); a(f'v_and_b32 {t2}, 3, v0'); a(f'v_mul_u32_u24 {t2}, {MODS}, {t2}'); a(f'v_lshl_add_u32 {t2}, {t0}, 4, {t2}')
        a('s_and_b32 s3, s10, 3'); a('s_mul_i32 s3, s3, 896'); a(f's_add_u32 s3, s3, {WS_MOD + 3*3584}'); a(f'v_add_u32 {t2}, s3, {t2}')
        def ld():
            a(f'global_load_dwordx4 {mg[0:4]}, {t2}, s[50:51] sc1'); a(f'global_load_dwordx4 {mg[4:8]}, {t2}, s[50:51] offset:3584 sc1')
        ld()
        a('s_waitcnt vmcnt(2)')
        self.ldsflag_set(L_FL + 224, wq, t1, t3)
        a('s_cmp_eq_u32 s6, 4'); a('s_cbranch_scc0 L_nowf')
        self.ldsflag_wait(L_FL + 224, c12[0:4], t1)
        a('s_lshl_b32 s15, s10, 7'); a(f's_add_u32 s15, s15, {WS_FLAGW}')
        a(f'v_mov_b32 {t1}, s15'); a(f'v_mov_b32 {t3}, s7'); a('s_mov_b64 exec, 1')
        a(f'global_store_dword {t1}, {t3}, s[50:51] sc1'); a('s_mov_b64 exec, -1')
        a('L_nowf:')
        self.stamp(4)
        self.poll(ld, lambda: self.tagcheck([mg[1], mg[3], mg[5], mg[7]]), preissued=True)
        self.quadsum_round(mg[0], mg[2]); self.quadsum_round(mg[4], mg[6])
        a(f'v_add_f32 {mg[4]}, 1.0, {mg[4]}'); a(f'v_add_f32 {mg[6]}, 1.0, {mg[6]}'); self.rbf(mg[4]); self.rbf(mg[6])
        a(f'v_lshlrev_b32 {t0}, 3, {t0}'); a(f'v_add_u32 {t0}, {L_MODV}, {t0}')
        a(f'ds_write2_b32 {t0}, {mg[0]}, {mg[2]} offset0:0 offset1:1'); a(f'ds_write2_b32 {t0}, {mg[4]}, {mg[6]} offset0:112 offset1:113')
        self.ldsflag_set(L_FL + 128, wq, t1, t3)
        self.ldsflag_wait(L_FL + 144, tmp, t0)
        for lv in range(4): self.wdraw(lv, raw(lv))
        a('L_noc:')
        self.stamp(7)
        a('s_mul_i32 s15, s17, 7'); a('s_lshr_b32 s15, s15, 2'); a('s_lshl_b32 s15, s15, 3')
        a(f'v_min_u32 {t0}, 23, {lane}'); a(f'v_add_u32 {t0}, s15, {t0}'); a(f'v_min_u32 {t0}, 223, {t0}'); a(f'v_lshlrev_b32 {t0}, 7, {t0}'); a(f'v_add_u32 {t0}, {WS_FLAGW}, {t0}')
        self.poll(lambda: a(f'global_load_dword {t1}, {t0}, s[50:51] sc1'), lambda: a(f'v_cmp_ne_u32 vcc, s7, {t1}'), sleep=2)
        self.stamp(6)
        a('s_mov_b32 s31, 0')
        self.ifconv('L_early')
        self.ldsflag_wait(L_FL + 208, tmp, t0)
        a(f'v_mov_b32 {t0}, {L_LV}'); a(f'ds_read_b32 {t1}, {t0}'); a('s_waitcnt lgkmcnt(0)'); a(f'v_readfirstlane_b32 s3, {t1}')
        a('s_cmp_eq_u32 s3, 0'); a('s_cbranch_scc0 L_late')
        a('L_early:')
        self.dma(SLOTS[0], 0, 3, l16)
        a('s_mov_b32 s31, 1')
        a('L_late:')
        self.stamp(5)
        self.ifconv('L_noc3')
        a('s_setprio 0')
        for i in range(8):
            for k in range(2):
                a(f'v_lshlrev_b32 {f[8*(2*k)+i]}, 16, {w[2*i+k]}'); a(f'v_and_b32 {f[8*(2*k+1)+i]}, 0xffff0000, {w[2*i+k]}')
        a(f'v_lshrrev_b32 {t0}, 4, v0'); a(f'v_cmp_gt_u32 s[8:9], 14, {t0}'); a(f'v_min_u32 {t0}, 13, {t0}'); a(f'v_lshlrev_b32 {t0}, 5, {t0}'); a(f'v_add_u32 {t0}, {L_MODV}, {t0}')
        self.ldsflag_wait(L_FL + 128, mg[0:4], t1)
        for k in range(2):
            a(f'ds_read_b128 {mg[4*k:4*k+4]}, {t0} offset:{16*k}'); a(f'ds_read_b128 {mg[8+4*k:12+4*k]}, {t0} offset:{448+16*k}')
        a('s_waitcnt lgkmcnt(0)')
        for i in range(8):
            for c in range(4):
                op = 'mul' if i == 0 else 'fmac'
                a(f'v_{op}_f32 {c12[c]}, {mg[8+i]}, {f[8*c+i]}'); a(f'v_{op}_f32 {c12[4+c]}, {mg[i]}, {f[8*c+i]}')
        for k in range(8): a(f'v_cndmask_b32 {c12[k]}, 0, {c12[k]}, s[8:9]')
        for sw in ['v_permlane16_swap_b32', 'v_permlane32_swap_b32']:
            for k in range(8): a(f'v_mov_b32 {f[k]}, {c12[k]}')
            for k in range(8): a(f'{sw} {c12[k]}, {f[k]}')
            for k in range(8): a(f'v_add_f32 {c12[k]}, {c12[k]}, {f[k]}')
        a('s_sub_u32 s15, s6, 4'); a('s_lshl_b32 s3, s15, 9'); a(f's_add_u32 s3, s3, {L_CS}'); a(f'v_lshl_add_u32 {t1}, {lane}, 5, s3')
        a('s_mov_b64 exec, 0xffff'); a(f'ds_write_b128 {t1}, {c12[0:4]}'); a(f'ds_write_b128 {t1}, {c12[4:8]} offset:16'); a('s_mov_b64 exec, -1')
        self.ldsflag_set(L_FL + 16, 's15', t1, t3)
        a('s_cmp_lt_u32 s6, 6'); a('s_cbranch_scc0 L_noc3')
        self.ldsflag_wait(L_FL + 16, f[0:4], t1)
        a('s_sub_u32 s15, s6, 4'); a(f'v_lshrrev_b32 {t1}, 5, {lane}'); a(f'v_lshl_add_u32 {t1}, s15, 1, {t1}')
        a(f'v_and_b32 {t2}, 3, {lane}'); a(f'v_lshl_add_u32 {t3}, {t1}, 2, {t2}'); a(f'v_lshlrev_b32 {t3}, 5, {t3}')
        a(f'v_and_b32 {t2}, 28, {lane}'); a(f'v_add3_u32 {t3}, {t3}, {t2}, 0'); a(f'v_add_u32 {t3}, {L_CS}, {t3}')
        for k in range(4): a(f'ds_read_b32 {f[2*k]}, {t3} offset:{512*k}')
        a('s_and_b32 s3, s10, 3'); a('s_mul_i32 s3, s3, 57344'); a('s_lshr_b32 s15, s10, 3'); a('s_lshl_b32 s15, s15, 11'); a('s_add_u32 s3, s3, s15')
        a('s_bfe_u32 s15, s10, 0x10002'); a('s_lshl_b32 s15, s15, 8'); a('s_add_u32 s3, s3, s15'); a(f's_add_u32 s3, s3, {WS_C12}')
        a(f'v_lshlrev_b32 {t1}, 9, {t1}'); a(f'v_and_b32 {t2}, 31, {lane}'); a(f'v_lshlrev_b32 {t2}, 3, {t2}'); a(f'v_add3_u32 {t1}, {t1}, {t2}, s3')
        a(f'v_mov_b32 {f[1]}, s7')
        a('s_waitcnt lgkmcnt(0)')
        a(f'v_add_f32 {f[0]}, {f[0]}, {f[2]}'); a(f'v_add_f32 {f[4]}, {f[4]}, {f[6]}'); a(f'v_add_f32 {f[0]}, {f[0]}, {f[4]}')
        a(f'global_store_dwordx2 {t1}, {f[0:2]}, s[50:51] sc1')
        v.free('mg', 'wf', 'c12')
        a('L_noc3:')
        a('s_setprio 2')
        self.stamp(8)
        a('s_barrier')
        a('s_cmp_eq_u32 s31, 1'); a('s_cbranch_scc1 L_done02')
        self.dma(SLOTS[0], 0, 3, l16)
        a('L_done02:')
        self.dma(SLOTS[3], 3, 2, l16)
        a(f'v_min_u32 {t2}, 223, v0'); a(f'v_lshlrev_b32 {t2}, 13, {t2}')
        a('s_and_b32 s3, s5, 3'); a('s_lshl_b32 s3, s3, 7'); a('s_lshl_b32 s15, s16, 9'); a('s_add_u32 s62, s15, s3')
        if 'spec' in self.opt: a(f'buffer_load_dword {dum}, {t2}, s[52:55], s62 offen sc1')
        xs = v.alloc('xs', 8, 4)
        a(f'v_lshrrev_b32 {t0}, 3, {lane}'); a(f'v_lshlrev_b32 {t0}, 13, {t0}'); a(f'v_and_b32 {t1}, 7, {lane}'); a(f'v_lshl_add_u32 {t0}, {t1}, 2, {t0}')
        a('s_sub_u32 s15, s6, 4'); a(f's_mul_i32 s15, s15, {56*8192}'); a('s_lshl_b32 s3, s16, 9'); a('s_add_u32 s15, s15, s3'); a('s_lshl_b32 s3, s17, 5'); a('s_add_u32 s15, s15, s3')
        a(f'v_add_u32 {t0}, s15, {t0}')
        a(f'v_min_u32 {t2}, 55, {lane}'); a('s_sub_u32 s15, s6, 4'); a('s_mul_i32 s15, s15, 56'); a(f'v_add_u32 {t2}, s15, {t2}')
        a('s_lshr_b32 s3, s16, 2'); a('s_mul_i32 s3, s3, 224'); a(f'v_add_u32 {t3}, s3, {t2}'); a(f'v_lshlrev_b32 {t3}, 7, {t3}'); a(f'v_add_u32 {t3}, {WS_FLAGX}, {t3}')
        a(f'v_lshlrev_b32 {t2}, 13, {t2}')
        a('s_and_b32 s3, s5, 3'); a('s_lshl_b32 s3, s3, 7'); a('s_lshl_b32 s15, s16, 9'); a('s_add_u32 s62, s15, s3')
        a('s_mov_b64 s[8:9], 0')
        def ckx():
            if 'xwarm' not in self.opt:
                a(f'v_cmp_ne_u32 vcc, s7, {t1}'); return
            L = a.label('nw')
            a(f'v_cmp_ne_u32 vcc, s7, {t1}'); a('s_nor_b64 s[60:61], vcc, s[8:9]'); a(f's_cbranch_scc0 {L}')
            a('s_mov_b64 exec, s[60:61]'); a(f'buffer_load_dword {xs[7]}, {t2}, s[52:55], s62 offen sc1'); a('s_mov_b64 exec, -1')
            a('s_or_b64 s[8:9], s[8:9], s[60:61]')
            a(f'{L}:')
        self.poll(lambda: a(f'global_load_dword {t1}, {t3}, s[50:51] sc1'), ckx, sleep=1)
        for i in range(7):
            a(f's_mov_b32 s15, {i*8*8192}'); a(f'buffer_load_dword {xs[i]}, {t0}, s[36:39], s15 offen sc1')
        self.stamp(9)
        a('s_barrier')
        a('s_waitcnt vmcnt(0)')
        sq = v.alloc('sq', 4, 4)
        a(f'v_mov_b32 {sq[0]}, 0'); a(f'v_mov_b32 {sq[1]}, 0')
        for i in range(7):
            a(f'v_lshlrev_b32 {t0}, 16, {xs[i]}'); a(f'v_and_b32 {t1}, 0xffff0000, {xs[i]}')
            a(f'v_add_f32 {sq[0]}, {sq[0]}, {t0}'); a(f'v_fmac_f32 {sq[1]}, {t0}, {t0}'); a(f'v_add_f32 {sq[0]}, {sq[0]}, {t1}'); a(f'v_fmac_f32 {sq[1]}, {t1}, {t1}')
        for k in range(2): a(f'v_add_f32_dpp {sq[k]}, {sq[k]}, {sq[k]} row_ror:8 row_mask:0xf bank_mask:0xf')
        for sw in ['v_permlane16_swap_b32', 'v_permlane32_swap_b32']:
            for k in range(2): a(f'v_mov_b32 {sq[2+k]}, {sq[k]}')
            for k in range(2): a(f'{sw} {sq[k]}, {sq[2+k]}')
            for k in range(2): a(f'v_add_f32 {sq[k]}, {sq[k]}, {sq[2+k]}')
        a('s_sub_u32 s15, s6, 4'); a('s_lshl_b32 s3, s15, 6'); a(f's_add_u32 s3, s3, {L_S2}'); a(f'v_lshl_add_u32 {t1}, {lane}, 3, s3')
        a('s_mov_b64 exec, 0xff'); a(f'ds_write_b64 {t1}, {sq[0:2]}'); a('s_mov_b64 exec, -1')
        self.ldsflag_set(L_FL + 32, 's15', t1, t3)
        a('s_cmp_eq_u32 s6, 4'); a('s_cbranch_scc0 L_nos2')
        self.ldsflag_wait(L_FL + 32, xs[0:4], t1)
        a(f'v_and_b32 {t1}, 7, {lane}'); a(f'v_lshlrev_b32 {t2}, 3, {t1}'); a(f'v_add_u32 {t2}, {L_S2}, {t2}')
        for k in range(4): a(f'ds_read_b64 {xs[2*k:2*k+2]}, {t2} offset:{64*k}')
        a('s_lshl_b32 s15, s16, 4'); a('s_add_u32 s15, s15, s17'); a('s_lshl_b32 s15, s15, 7'); a(f's_add_u32 s15, s15, {WS_ST2}'); a(f'v_lshl_add_u32 {t1}, {t1}, 4, s15')
        a('s_waitcnt lgkmcnt(0)')
        for k in range(2):
            a(f'v_add_f32 {xs[k]}, {xs[k]}, {xs[2+k]}'); a(f'v_add_f32 {xs[4+k]}, {xs[4+k]}, {xs[6+k]}'); a(f'v_add_f32 {xs[k]}, {xs[k]}, {xs[4+k]}')
        self.sd_from(xs[0], xs[1]); self.rbf(xs[1]); a(f'v_rcp_f32 {sq[2]}, {xs[1]}')
        a(f'v_mov_b32 {sq[1]}, s7'); a(f'v_mov_b32 {sq[3]}, s7'); a(f'v_mul_f32 {sq[0]}, {xs[0]}, {sq[2]}'); a(f'v_sub_f32 {sq[0]}, 0, {sq[0]}')
        a('s_mov_b64 exec, 0xff'); a(f'global_store_dwordx4 {t1}, {sq}, s[50:51] sc1'); a('s_mov_b64 exec, -1')
        a('L_nos2:')
        a(f'v_min_u32 {t0}, 223, v0'); a(f's_mul_i32 s15, s17, 3584'); a(f's_add_u32 s15, s15, {WS_C12}'); a(f'v_lshl_add_u32 {t1}, {t0}, 4, s15')
        a(f'v_bfe_u32 {t2}, v0, 2, 5'); a(f'v_and_b32 {t3}, 3, v0'); a(f'v_mul_u32_u24 {t3}, {MODS}, {t3}'); a(f'v_lshl_add_u32 {t3}, {t2}, 4, {t3}')
        a('s_min_u32 s15, s19, 6'); a('s_lshl_b32 s15, s15, 9'); a(f's_add_u32 s15, s15, {WS_MOD + 5*3584}'); a(f'v_add_u32 {t3}, s15, {t3}')
        cp4 = v.alloc('cp4', 12, 4); ca3 = v.alloc('ca3', 3)
        for k in range(3): a(f'v_add_u32 {ca3[k]}, {57344*(k+1)}, {t1}')
        def ldc():
            a(f'global_load_dwordx4 {xs[0:4]}, {t1}, s[50:51] sc1'); a(f'global_load_dwordx4 {xs[4:8]}, {t3}, s[50:51] sc1')
            for k in range(3): a(f'global_load_dwordx4 {cp4[4*k:4*k+4]}, {ca3[k]}, s[50:51] sc1')
        self.poll(ldc, lambda: self.tagcheck([xs[1], xs[3], xs[5], xs[7]] + [cp4[2*k+1] for k in range(6)]))
        for e in (0, 2):
            a(f'v_add_f32 {xs[e]}, {xs[e]}, {cp4[e]}'); a(f'v_add_f32 {cp4[4+e]}, {cp4[4+e]}, {cp4[8+e]}'); a(f'v_add_f32 {xs[e]}, {xs[e]}, {cp4[4+e]}')
        a(f'v_lshlrev_b32 {t0}, 3, {t0}'); a(f'v_add_u32 {t0}, {L_C12}, {t0}'); a(f'ds_write2_b32 {t0}, {xs[0]}, {xs[2]} offset0:0 offset1:1')
        self.quadsum_round(xs[4], xs[6])
        a(f'v_lshlrev_b32 {t2}, 3, {t2}'); a(f'v_add_u32 {t2}, {L_GB}, {t2}'); a(f'ds_write2_b32 {t2}, {xs[4]}, {xs[6]} offset0:0 offset1:1')
        self.ifconv('L_noperm')
        a('s_setprio 0')
        a('s_mov_b32 s8, 0x05040100'); a('s_mov_b32 s9, 0x07060302')
        for lv in range(4): self.wdperm(raw(lv), WA[32*lv:32*lv+32], tmp)
        a('s_setprio 2')
        a('L_noperm:')
        a('s_waitcnt lgkmcnt(0)')
        v.restore(snap)

    def helper_warm(self):
        a = self.a; v = self.v; t0, t1, t2, t3 = self.t
        fl = v.alloc('hfl', 4, 4)
        self.ldsflag_wait(L_FL + 64, fl, t0)
        a('s_lshl_b32 s15, s4, 2'); a('s_add_u32 s15, s15, s5'); a('s_sub_u32 s15, s15, 28'); a(f's_mul_i32 s15, s15, {392*128}')
        a(f'v_lshlrev_b32 {t0}, 7, v0'); a(f'v_min_u32 {t1}, 135, v0'); a(f'v_lshlrev_b32 {t1}, 7, {t1}'); a(f'v_add_u32 {t1}, 32768, {t1}')
        a(f'buffer_load_dword {fl[0]}, {t0}, s[20:23], s15 offen'); a(f'buffer_load_dword {fl[1]}, {t1}, s[20:23], s15 offen')
        a('s_waitcnt vmcnt(0)')
        v.free('hfl')

    def gemm1(self):
        a = self.a; v = self.v; t0, t1, t2, t3 = self.t; lane = self.lane
        snap = v.snapshot()
        X = v.alloc('X', 112, 4); ACC = [v.alloc(f'acc{i}', 16, 4) for i in range(5)]; AF = v.alloc('AF', 32, 4)
        vo = v.alloc('vo', 4); la = v.alloc('la', 2); st = v.alloc('st', 4, 4); hh = v.alloc('hho', 4, 4); ha = v.alloc('ha', 2); ca = v.alloc('ca'); sta = v.alloc('sta')
        a(f'v_lshrrev_b32 {t0}, 5, {lane}'); a(f'v_and_b32 {t1}, 31, {lane}'); a(f'v_lshlrev_b32 {vo[0]}, 15, {t0}'); a(f'v_lshl_add_u32 {vo[0]}, {t1}, 2, {vo[0]}')
        a('s_lshl_b32 s15, s16, 9'); a('s_lshl_b32 s3, s6, 7'); a('s_add_u32 s15, s15, s3'); a(f'v_add_u32 {vo[0]}, s15, {vo[0]}')
        for j in range(1, 4): a(f'v_add_u32 {vo[j]}, {8192*j}, {vo[0]}')
        a('s_lshl_b32 s15, s15, 2'); a(f's_add_u32 s15, s15, {WS_ST2}'); a(f'v_lshl_add_u32 {sta}, {t1}, 4, s15')
        a(f'v_bfe_u32 {t1}, {lane}, 4, 1'); a(f'v_mul_u32_u24 {la[0]}, 14592, {t1}'); a(f'v_bfe_u32 {t1}, {lane}, 2, 2'); a(f'v_mul_u32_u24 {t1}, 3648, {t1}')
        a(f'v_and_b32 {t2}, 3, {lane}'); a(f'v_lshlrev_b32 {t2}, 4, {t2}'); a(f'v_add3_u32 {la[0]}, {la[0]}, {t1}, {t2}'); a(f'v_lshl_add_u32 {la[0]}, {t0}, 6, {la[0]}')
        a(f'v_add_u32 {la[1]}, {SLOTS[0]}, {la[0]}')
        a(f'v_lshlrev_b32 {ca}, 4, {t0}'); a(f'v_add_u32 {ca}, {L_C12}, {ca}')
        a('s_lshl_b32 s15, s16, 2'); a('s_add_u32 s15, s15, s6'); a('s_mul_i32 s15, s15, 112'); a('s_mul_i32 s3, s17, 7'); a('s_add_u32 s15, s15, s3')
        a('s_lshl_b32 s15, s15, 10'); a(f's_add_u32 s15, s15, {WS_HH}'); a(f'v_lshl_add_u32 {ha[0]}, {lane}, 4, s15'); a(f'v_add_u32 {ha[1]}, 4096, {ha[0]}')
        a('s_lshl_b32 s15, s16, 4'); a('s_add_u32 s15, s15, s17'); a('s_lshl_b32 s15, s15, 2'); a('s_add_u32 s15, s15, s6'); a('s_lshl_b32 s15, s15, 7')
        a(f's_add_u32 s62, s15, {WS_FLAGH}'); a('s_lshl_b32 s63, s7, 3'); a('s_lshl_b32 s61, s6, 2'); a(f's_add_u32 s61, s61, {L_FL + 80}')
        a('s_barrier')
        self.stamp(9)
        def xload(ks):
            a(f's_mov_b32 s15, {ks*65536}')
            for j in range(4): a(f'buffer_load_dword {X[4*ks+j]}, {vo[j]}, s[52:55], s15 offen sc1')
        def aread(slot, ks, dst):
            b = SLOTS[slot]
            base, off = (la[1], b - SLOTS[0]) if b >= SLOTS[0] else (la[0], b)
            return f'ds_read_b128 {dst}, {base} offset:{off + ks*128}'
        PRE = int([o[3:] for o in self.opt if o.startswith('pre')][0]) if any(o.startswith('pre') for o in self.opt) else 5
        spread = 'spread' in self.opt
        for ks in range(PRE): xload(ks)
        for n in range(8): a(aread(n % 4, n // 4, AF[4*n:4*n+4]))
        for ks in range(28):
            issued = min(28, PRE + ks)
            extra = 1 if ks > 25 else 0
            for tl in range(4):
                n = 4*ks + tl; r = AF[4*(n % 8):4*(n % 8)+4]
                lg = 7 if n <= 108 else 7 - (n - 108)
                if tl == 0: a(f's_waitcnt vmcnt({4*(issued - ks - 1) + extra}) lgkmcnt({lg})')
                else: a(f's_waitcnt lgkmcnt({lg})')
                a(f'v_mfma_f32_32x32x16_bf16 {ACC[tl]}, {r}, {X[4*ks:4*ks+4]}, {ACC[tl] if ks else 0}')
                if ks < 26: a(aread(tl, ks + 2, r))
                elif ks == 26: a(aread(4, tl, r))
                if PRE + ks < 28:
                    if not spread:
                        if tl == 0: xload(PRE + ks)
                    else:
                        if tl == 0: a(f's_mov_b32 s15, {(PRE+ks)*65536}')
                        a(f'buffer_load_dword {X[4*(PRE+ks)+tl]}, {vo[tl]}, s[52:55], s15 offen sc1')
                if tl == 3 and ks == 25: a(f'global_load_dwordx4 {st}, {sta}, s[50:51] sc1')
        a('s_barrier')
        self.stamp(10)
        rr, nm = st[2], st[0]
        a(f'v_mov_b32 {t0}, s62')
        def flag_ops(level, vm):
            return (f's_add_u32 s3, s63, {level}\nv_mov_b32 {t1}, s3\ns_waitcnt vmcnt({vm})\ns_mov_b64 exec, 1\n'
                    f'global_store_dword {t0}, {t1}, s[50:51] sc1\ns_mov_b64 exec, -1')
        def epi_groups(jt, acc):
            gs = []
            for g in range(2):
                def reads(C, g=g):
                    o = jt * 256 + 32 * g
                    return [f'ds_read_b128 {C[4*k:4*k+4]}, {ca} offset:{o + 64*k}' for k in range(4)]
                def comp(C, g=g):
                    ops = []
                    for e in range(4): ops += [f'v_fmac_f32 {C[4+e]}, {nm}, {C[e]}', f'v_fmac_f32 {C[12+e]}, {nm}, {C[8+e]}']
                    for e in range(4): ops += [f'v_fmac_f32 {C[4+e]}, {rr}, {acc[4*g+e]}', f'v_fmac_f32 {C[12+e]}, {rr}, {acc[8+4*g+e]}']
                    for e in range(4): ops += [f'v_mul_f32 {C[4+e]}, {C[4+e]}, {C[12+e]}']
                    ops += [f'v_cvt_pk_bf16_f32 {hh[2*g]}, {C[4]}, {C[5]}', f'v_cvt_pk_bf16_f32 {hh[2*g+1]}, {C[6]}, {C[7]}']
                    if g == 1:
                        ops += [f'global_store_dwordx4 {ha[jt // 4]}, {hh}, s[50:51] offset:{1024*(jt % 4)} sc1']
                    return ops
                gs.append((reads, comp))
            return gs
        C0 = AF[16:32]
        accof = [ACC[0], ACC[1], ACC[2], ACC[3], ACC[4], ACC[0], ACC[1]]
        groups = []
        for jt in range(7): groups += epi_groups(jt, accof[jt])
        alt = {2: ACC[0], 3: None, 4: None}
        cbuf = [C0, C0, ACC[0], C0, ACC[0], C0, ACC[1], C0, ACC[2], C0, ACC[2], C0, ACC[2], C0]
        stage_groups = {4: range(0, 6), 5: range(6, 10), 6: range(10, 12)}
        q = ['a'] * 4
        def lds(txt): a(txt); q.append('x'); return len(q) - 1
        def lwait(idx): a(f's_waitcnt lgkmcnt({min(15, len(q) - 1 - idx)})')
        rd = {}
        def issue_reads(gi):
            for x in groups[gi][0](cbuf[gi]): rd[gi] = lds(x)
        issue_reads(0)
        self.poll(lambda: a(f'global_load_dwordx4 {st}, {sta}, s[50:51] sc1'), lambda: self.tagcheck([st[1], st[3]]), preissued=True, sleep=1)
        self.stamp2(1)
        seq = [(4, 4, ACC[4]), (5, 0, ACC[0]), (6, 1, ACC[1])]
        flat = [(tile, slot, acc, ks) for (tile, slot, acc) in seq for ks in range(28)]
        pend = {i: i for i in range(4)}
        for n, (tile, slot, acc, ks) in enumerate(flat):
            if ks == 0:
                eops = []
                for gi in stage_groups[tile]:
                    if gi == 1: eops += [('rd', gi), ('gap', None), ('gap', None)]
                    eops += [('wait', gi)]
                    nx = gi + 1
                    body = [('v', x) for x in groups[gi][1](cbuf[gi])]
                    if nx != 1 and nx < 14:
                        pos = 16 if nx == 2 else 1
                        body = body[:pos] + [('rd', nx)] + body[pos:]
                    eops += body
                if tile == 6: eops = [('gap', None)]*6 + [('v', flag_ops(4, 1))] + eops
                ei = 0
            lwait(pend[n])
            r = AF[4*(n % 4):4*(n % 4)+4]
            a(f'v_mfma_f32_32x32x16_bf16 {acc}, {r}, {X[4*ks:4*ks+4]}, {acc if ks else 0}')
            if n + 4 < len(flat):
                t2_, s2_, _, k2 = flat[n + 4]
                if t2_ == 5 and k2 == 0: self.stamp2(2); a('s_barrier'); self.stamp2(3)
                pend[n + 4] = lds(aread(s2_, k2, r))
            if ks == 27 and tile < 6:
                a(f'v_mov_b32 {t2}, s61'); a(f'v_mov_b32 {t3}, 1'); lds(f'ds_write_b32 {t2}, {t3} offset:{16*(tile-4)}')
            want = (len(eops) * (ks + 1) + 26) // 27 if ks < 27 else len(eops)
            while ei < min(want, len(eops)):
                kind, x = eops[ei]; ei += 1
                if kind == 'rd': issue_reads(x)
                elif kind == 'wait': lwait(rd[x])
                elif kind == 'gap': break
                else: a(x)
        self.stamp2(4)
        self.stamp2(6)
        lwait(rd[12])
        body = groups[12][1](cbuf[12])
        a(body[0]); issue_reads(13)
        for x in body[1:]: a(x)
        lwait(rd[13])
        for x in groups[13][1](cbuf[13]): a(x)
        self.stamp2(7)
        a(flag_ops(7, 0))
        a('s_cmp_lt_u32 s5, 28'); a('s_cbranch_scc0 L_nohw')
        a('s_lshr_b32 s15, s18, 1'); a('s_lshl_b32 s15, s15, 6'); a('s_and_b32 s3, s18, 1'); a('s_lshl_b32 s3, s3, 1'); a('s_add_u32 s15, s15, s3')
        a(f'v_bfe_u32 {t0}, {lane}, 1, 4'); a(f'v_and_b32 {t1}, 1, {lane}'); a(f'v_lshl_add_u32 {t0}, {t0}, 2, {t1}'); a(f'v_add_u32 {t0}, s15, {t0}')
        a(f'v_lshlrev_b32 {t0}, 7, {t0}'); a(f'v_add_u32 {t0}, {WS_FLAGH}, {t0}')
        a('s_cmp_eq_u32 s6, 0'); a('s_cbranch_scc0 L_nohw')
        def ck():
            a(f'v_subrev_u32 {t1}, s63, {t1}'); a(f'v_cmp_ne_u32 vcc, 7, {t1}')
        self.poll(lambda: a(f'global_load_dword {t1}, {t0}, s[50:51] sc1'), ck, sleep=1)
        a(f'v_mov_b32 {hh[2]}, {L_LV + 28}'); a(f'v_mov_b32 {hh[3]}, 1'); a(f'ds_write_b32 {hh[2]}, {hh[3]}')
        a('L_nohw:')
        a('s_branch L_fin')
        v.restore(snap)

    def hhline(self, e, x, y, jt0):
        a = self.a
        a(f'v_bfe_u32 {x}, {e}, 7, 1'); a(f'v_mul_u32_u24 {x}, {112*1024}, {x}'); a(f'v_bfe_u32 {y}, {e}, 3, 4'); a(f'v_mul_u32_u24 {y}, 7168, {y}'); a(f'v_add_u32 {x}, {x}, {y}')
        a(f'v_lshrrev_b32 {y}, 8, {e}'); a(f'v_lshlrev_b32 {y}, 10, {y}'); a(f'v_and_b32 {e}, 7, {e}'); a(f'v_lshlrev_b32 {e}, 7, {e}'); a(f'v_add3_u32 {e}, {e}, {x}, {y}')
        a(f's_mul_i32 s15, s18, {2*112*1024}'); a(f's_add_u32 s15, s15, {1024*jt0}')
    def tileA(self, sp): return 14*(sp & 1) + (sp >> 1)
    def wdraw(self, lv, dst):
        for i, ro in enumerate((0, 4, 8, 12, 2, 6, 10, 14)):
            self.a(f's_mov_b32 s15, {lv*14336 + ro*896}'); self.a(f'buffer_load_dwordx4 {dst[4*i:4*i+4]}, {self.va}, s[20:23], s15 offen')
    def wdperm(self, src, dst, tmp):
        a = self.a
        for c in range(4):
            sel = 's9' if c & 1 else 's8'
            for m in range(4):
                a(f'v_perm_b32 {dst[4*c+m]}, {src[8*m+4+(c>>1)]}, {src[8*m+(c>>1)]}, {sel}')
                a(f'v_perm_b32 {tmp[m]}, {src[8*m+4+(c>>1)]}, {src[8*m+(c>>1)]}, {sel}')
                a(f'v_perm_b32 {dst[16+4*c+m]}, {src[8*m+6+(c>>1)]}, {src[8*m+2+(c>>1)]}, {sel}')
            for m in range(4): a(f'v_mov_b32_dpp {dst[4*c+m]}, {dst[16+4*c+m]} row_ror:8 row_mask:0xf bank_mask:0xc')
            for m in range(4): a(f'v_mov_b32_dpp {dst[16+4*c+m]}, {tmp[m]} row_ror:8 row_mask:0xf bank_mask:0x3')

    def gemm2(self):
        a = self.a; v = self.v; t0, t1, t2, t3 = self.t; lane = self.lane
        v.free('wd')
        WA = self.WA; wq = self.wq; NPRE = self.NPRE
        ACC = v.at('acc', 8, 64); HB = v.at('HB', 72, 48); vb = v.alloc('vb', 2); fa = v.alloc('fa'); lw = v.alloc('lw'); dum = v.alloc('dum')
        a(f'v_lshrrev_b32 {t0}, 5, {lane}'); a(f'v_mul_u32_u24 {vb[0]}, 7168, {t0}'); a(f'v_bfe_u32 {t0}, {lane}, 4, 1'); a(f'v_lshlrev_b32 {t0}, 9, {t0}')
        a(f'v_and_b32 {t1}, 15, {lane}'); a(f'v_lshlrev_b32 {t1}, 4, {t1}'); a(f'v_add3_u32 {vb[0]}, {vb[0]}, {t0}, {t1}')
        a(f's_mul_i32 s15, s18, {2*112*1024}'); a(f's_mul_i32 s3, {wq}, {28*1024}'); a('s_add_u32 s15, s15, s3')
        a(f'v_add_u32 {vb[0]}, s15, {vb[0]}'); a(f'v_add_u32 {vb[1]}, {112*1024}, {vb[0]}')
        a('s_lshr_b32 s15, s18, 1'); a('s_lshl_b32 s15, s15, 6')
        a('s_and_b32 s3, s18, 1'); a('s_lshl_b32 s3, s3, 1'); a('s_add_u32 s15, s15, s3')
        a(f'v_bfe_u32 {t0}, {lane}, 1, 4'); a(f'v_and_b32 {t1}, 1, {lane}'); a(f'v_lshl_add_u32 {t0}, {t0}, 2, {t1}'); a(f'v_add_u32 {t0}, s15, {t0}')
        a(f'v_lshlrev_b32 {t0}, 7, {t0}'); a(f'v_add_u32 {fa}, {WS_FLAGH}, {t0}'); a('s_lshl_b32 s63, s7, 3')
        own = [SLOTS[3], SLOTS[2], SLOTS[4], SLOTS[0]]
        a(f's_mov_b32 s62, {own[0]}')
        for k in range(1, 4): a(f's_cmp_eq_u32 {wq}, {k}'); a(f's_cselect_b32 s62, {own[k]}, s62')
        a(f'v_lshl_add_u32 {lw}, {lane}, 4, s62')
        self.stamp2(1)
        a('s_barrier')
        self.stamp2(2)
        a(f'v_lshlrev_b32 {t2}, 4, {lane}')
        self.dma(SLOTS[0], 5, 2, t2)
        a('s_waitcnt vmcnt(0)')
        self.stamp2(3)
        a('s_barrier')
        self.ifconv('L_fin')
        a('s_setprio 0')
        tmp4 = HB[32:36]; OUT = R('v', HB.i, 32)
        RS = [ACC[0:32], ACC[32:64]]
        for k in range(2): self.wdraw(4 + k, RS[k])
        a(f's_cmp_lt_u32 {wq}, 2'); a('s_cbranch_scc1 L_slotok')
        a(f's_lshl_b32 s3, {wq}, 4'); a(f's_add_u32 s60, s3, {L_FL + 80 - 32}')
        self.ldsflag_wait('s60', tmp4, t0)
        a('L_slotok:')
        a('s_mov_b32 s8, 0x05040100'); a('s_mov_b32 s9, 0x07060302')
        for k in range(3):
            a(f's_waitcnt vmcnt({8 if k < 2 else 0}) lgkmcnt(0)')
            self.wdperm(RS[k & 1], OUT, tmp4)
            if k == 0: self.wdraw(6, RS[0])
            for c in range(8): a(f'ds_write_b128 {lw}, {OUT[4*c:4*c+4]} offset:{8192*k + 1024*c}')
        a('s_setprio 2')
        self.stamp2(4)
        def flagck(k):
            def ck():
                a(f'v_subrev_u32 {t1}, s63, {t1}'); a(f'v_subrev_u32 {t1}, {k}, {t1}'); a(f'v_cmp_lt_u32 vcc, {7-k}, {t1}')
            return ck
        fload = lambda: a(f'global_load_dword {t1}, {fa}, s[50:51] sc1')
        free = [HB[16*i:16*i+16] for i in range(3)]; hb = {}; vq = []
        def bload(n):
            r = hb[n] = free.pop(0)
            a(f's_mov_b32 s15, {self.tileA(n)*1024}')
            for u in range(4): a(f'buffer_load_dwordx4 {r[4*u:4*u+4]}, {vb[u >> 1]}, s[24:27], s15 offen offset:{256*(u & 1)} sc1')
            vq.extend([n]*4)
        def need(level):
            L = a.label('lv'); D = a.label('lvd'); cnt = self.s.alloc('spin')
            a(f's_mov_b32 {cnt}, 0'); a(f'v_mov_b32 {t0}, {L_LV + 4*level}')
            a(f'{L}:'); a(f'ds_read_b32 {t1}, {t0}'); a('s_waitcnt lgkmcnt(0)'); a(f'v_cmp_eq_u32 vcc, 0, {t1}'); a(f's_cbranch_vccz {D}')
            a(f's_add_u32 {cnt}, {cnt}, 1'); a(f's_cmp_lt_u32 {cnt}, {SPIN*20}'); a(f's_cbranch_scc1 {L}')
            a(f'{D}:'); self.s.free('spin')
        a('s_waitcnt lgkmcnt(0)')
        self.poll(fload, flagck(4), sleep=1)
        self.stamp(10)
        bload(0); bload(1); bload(2)
        nxt = 3; have = 4; stg = None; xe = None
        NEEDAT = 4
        def aread(n):
            r = stg[n & 1]
            for c in range(4): a(f'ds_read_b128 {r[4*c:4*c+4]}, {lw} offset:{4096*(n-NPRE) + 1024*c}')
        for n in range(14):
            idx = [i for i, e in enumerate(vq) if e == n]
            w = f'vmcnt({len(vq) - 1 - max(idx)})'
            if n >= NPRE: w += f' lgkmcnt({4 if n < 13 else 0})'
            a(f's_waitcnt {w}')
            wa = WA[16*n:16*n+16] if n < NPRE else stg[n & 1]
            for u in range(4):
                for c in range(4):
                    d = ACC[16*u+4*c:16*u+4*c+4]
                    a(f'v_mfma_f32_16x16x32_bf16 {d}, {wa[4*c:4*c+4]}, {hb[n][4*u:4*u+4]}, {d if n else 0}')
            free.append(hb[n])
            if n < NPRE: free.append(WA[16*n:16*n+16])
            if n >= NPRE and n + 2 < 14: aread(n + 2)
            while nxt < 14 and free and (nxt < 8 or n >= NEEDAT):
                if nxt >= 8 and have < 7: need(7); have = 7
                bload(nxt); nxt += 1
            if n == 3: self.stamp2(6)
            if n == 6:
                stg = [free.pop(0), free.pop(0)]; aread(NPRE); aread(NPRE + 1)
                xe = free.pop(0)
                a(f'v_bfe_u32 {t0}, {lane}, 4, 1'); a(f'v_lshlrev_b32 {t0}, 17, {t0}'); a(f'v_lshrrev_b32 {t1}, 5, {lane}'); a(f'v_lshl_add_u32 {t0}, {t1}, 14, {t0}')
                a(f'v_and_b32 {t1}, 15, {lane}'); a(f'v_lshl_add_u32 {t0}, {t1}, 2, {t0}')
                a('s_lshl_b32 s15, s19, 18'); a(f's_lshl_b32 s3, {wq}, 6'); a('s_add_u32 s15, s15, s3'); a('s_lshl_b32 s3, s18, 8'); a('s_add_u32 s15, s15, s3')
                a(f'v_add_u32 {t0}, s15, {t0}')
                for r in range(8):
                    a(f's_mov_b32 s15, {(4*(r >> 1) + (r & 1))*8192}'); a(f'buffer_load_dword {xe[r]}, {t0}, s[36:39], s15 offen sc1'); vq.append('x')
        self.stamp2(7)
        for k in range(16): a(f'ds_write_b128 {lw}, {ACC[4*k:4*k+4]} offset:{1024*k}')
        self.ldsflag_set(L_FL + 48, wq, t2, t3)
        gb = free.pop(0); tmp = free.pop(0)
        a(f'v_bfe_u32 {t0}, {lane}, 4, 1'); a(f'v_lshlrev_b32 {t0}, 3, {t0}'); a(f'v_lshrrev_b32 {t2}, 5, {lane}'); a(f'v_add_u32 {t0}, {t0}, {t2}')
        a(f'v_lshlrev_b32 {t2}, 4, {t0}'); a(f'v_add_u32 {t2}, {L_GB}, {t2}')
        for k in range(4): a(f'ds_read_b128 {gb[4*k:4*k+4]}, {t2} offset:{32*k}')
        a(f'v_and_b32 {t1}, 15, {lane}'); a(f's_lshl_b32 s3, {wq}, 4'); a('s_lshl_b32 s15, s18, 6'); a('s_add_u32 s15, s15, s3')
        a(f'v_add_u32 {t1}, s15, {t1}'); a(f'v_mul_u32_u24 {t1}, 896, {t1}'); a(f'v_lshl_add_u32 {t1}, {t0}, 3, {t1}')
        a('s_lshl_b32 s15, s19, 7'); a(f'v_add_u32 {t1}, s15, {t1}')
        a(f's_lshl_b32 s15, {wq}, 12'); a(f'v_lshl_add_u32 {t2}, {lane}, 4, s15'); a(f'v_add_u32 {t0}, {SLOTS[0]}, {t2}')
        a('s_waitcnt vmcnt(0)')
        X = free.pop(0)
        for r in range(8): a(f'v_lshlrev_b32 {X[2*r]}, 16, {xe[r]}'); a(f'v_and_b32 {X[2*r+1]}, 0xffff0000, {xe[r]}')
        self.ldsflag_wait(L_FL + 48, tmp[0:4], t3)
        self.stamp2(8)
        P = ACC
        for src in range(4):
            base, off = (t2, own[src]) if own[src] < SLOTS[0] else (t0, own[src] - SLOTS[0])
            for k in range(4): a(f'ds_read_b128 {P[16*src+4*k:16*src+4*k+4]}, {base} offset:{off + 1024*k}')
        a('s_waitcnt lgkmcnt(8)')
        for r in range(8): a(f'v_pk_add_f32 {P[2*r:2*r+2]}, {P[2*r:2*r+2]}, {P[16+2*r:18+2*r]}')
        a('s_waitcnt lgkmcnt(0)')
        for r in range(8): a(f'v_pk_add_f32 {P[32+2*r:34+2*r]}, {P[32+2*r:34+2*r]}, {P[48+2*r:50+2*r]}')
        for r in range(8): a(f'v_pk_add_f32 {P[2*r:2*r+2]}, {P[2*r:2*r+2]}, {P[32+2*r:34+2*r]}')
        for r in range(4):
            for c in range(4): a(f'v_fmac_f32 {X[4*r+c]}, {gb[4*r+c]}, {P[4*c+r]}')
        for k in range(8): a(f'v_cvt_pk_bf16_f32 {P[32+k]}, {X[2*k]}, {X[2*k+1]}')
        for r in range(4): a(f'global_store_dwordx2 {t1}, {P[32+2*r:34+2*r]}, s[46:47] offset:{16*r}')
        a('s_cmp_eq_u32 s2, 0'); a('s_cbranch_scc0 L_fin'); a('s_cmp_eq_u32 s6, 4'); a('s_cbranch_scc0 L_fin')
        a(f'v_mov_b32 {t0}, 0'); a(f'v_mov_b32 {t2}, s7'); a('s_mov_b64 exec, 1'); a(f'global_store_dword {t0}, {t2}, s[50:51] sc1'); a('s_mov_b64 exec, -1')

    def finish(self):
        a = self.a
        a('L_fin:')
        if self.diag:
            t0, t1 = self.t[0], self.t[1]
            a(f's_{self.clk} s[98:99]'); a('s_memrealtime s[8:9]'); a('s_waitcnt lgkmcnt(0)')
            a('s_lshl_b32 s3, s2, 3'); a('s_add_u32 s3, s3, s6'); a('s_lshl_b32 s3, s3, 6'); a(f's_add_u32 s3, s3, {WS_TIME}')
            a(f'v_mov_b32 {t0}, s3'); a('s_mov_b64 exec, 1')
            for k in range(12):
                a(f'v_mov_b32 {t1}, s{76+2*k}'); a(f'global_store_dword {t0}, {t1}, s[50:51] offset:{4*k}')
            a(f'v_mov_b32 {t1}, s100'); a(f'global_store_dword {t0}, {t1}, s[50:51] offset:48')
            a(f'v_mov_b32 {t1}, s8'); a(f'global_store_dword {t0}, {t1}, s[50:51] offset:52')
            if 'dbg' in self.opt:
                a('s_cmp_eq_u32 s2, 9'); a('s_cbranch_scc0 L_end'); a('s_and_b32 s3, s6, 3'); a('s_cmp_eq_u32 s3, 0'); a('s_cbranch_scc0 L_end')
                a('s_lshl_b32 s3, s6, 3'); a(f'v_mov_b32 {t0}, s3')
                for i, k in enumerate((1, 3, 6, 8, 9, 10, 11)):
                    a(f's_sub_u32 s15, s{76+2*k}, s76'); a(f'v_mov_b32 {t1}, s15'); a(f'global_store_dword {t0}, {t1}, s[48:49] offset:{4*i}')
            a('s_mov_b64 exec, -1')
        a('L_end:'); a('s_endpgm')

    def build(self):
        a = self.a
        if self.diag:
            for k in range(12): a(f's_mov_b32 s{76+2*k}, 0')
        self.prologue()
        snap = self.v.snapshot()
        self.g0_kgen()
        self.g0_front()
        self.conv()
        a('L_g0b:')
        a('s_barrier')
        self.gemm1()
        self.v.restore(snap)
        a('L_g1:')
        self.g1_front()
        self.g1_mid()
        self.gemm2()
        self.finish()
        bad = a.check_branches()
        for b in bad: print('HAZARD across branch:', b, file=sys.stderr)
        for b in check_async(a): print('ASYNC:', b, file=sys.stderr)
        hdr = open('cdna_kernels/' + NAME + '.s.ref').read().split('; Override launch')[0]
        out = hdr + f'; @launch grid=(256,1,1) block=(512,1,1) lds={LDS_TOTAL}\n'
        out += f'.amdgcn_target "amdgcn-amd-amdhsa--gfx950"\n.text\n.globl {NAME}_kernel\n.p2align 8\n.type {NAME}_kernel,@function\n{NAME}_kernel:\n'
        out += a.text() + '\nL_code_end:\n'
        out += f'''.section .rodata,"a"
.p2align 6
.amdhsa_kernel {NAME}_kernel
  .amdhsa_next_free_vgpr 256
  .amdhsa_next_free_sgpr 102
  .amdhsa_accum_offset 256
  .amdhsa_group_segment_fixed_size 0
  .amdhsa_kernarg_size 144
  .amdhsa_user_sgpr_count 2
  .amdhsa_user_sgpr_kernarg_segment_ptr 1
  .amdhsa_system_sgpr_workgroup_id_x 1
.end_amdhsa_kernel
'''
        print(f'vgpr max {self.v.max} nops {a.nnops} insts {len(a.ins)}', file=sys.stderr)
        return out

if __name__ == '__main__':
    diag = 2 if '--cyc' in sys.argv else (1 if '--diag' in sys.argv else 0)
    opt = [x[2:] for x in sys.argv[2:] if x.startswith('-o')]
    open(sys.argv[1], 'w').write(Gen(diag=diag, opt=opt).build())
```
